```python
import torch

def _softmax(x, axis=-1):
    return torch.softmax(x, dim=axis)
def _gelu(x):
    return torch.nn.functional.gelu(x, approximate="tanh")
def _silu(x):
    return torch.nn.functional.silu(x)
def _sigmoid(x):
    return torch.sigmoid(x)
def _layernorm(x, axis=-1, eps=1e-5):
    m = x.mean(dim=axis, keepdim=True)
    v = x.var(dim=axis, keepdim=True, unbiased=False)
    return (x - m) / torch.sqrt(v + eps)
def _scatter_add(tgt, idx, src, axis=0):
    return tgt.clone().index_add_(axis, idx, src)
def _segment_sum(src, seg, n):
    out = torch.zeros((n,) + src.shape[1:], dtype=src.dtype)
    return out.index_add_(0, seg, src)
def _pad(x, pw):
    flat = tuple(v for pair in reversed(pw) for v in pair)
    return torch.nn.functional.pad(x, flat)

kernel_name = 'concat_heads__mha_block_cached__gqa_block_cached__near_ridge'

def setup_inputs():

    _w = (lambda a: (lambda t: t.to(torch.bfloat16) if t.is_floating_point() else t)(torch.as_tensor(a)))
    def _A_setup():
        B, Sq, D = 8, 128, 512
        H, Sk, Dh = 32, 1024, 128
        return {
            "x": _w((lambda *s: torch.randn(*s, dtype=torch.bfloat16) * 0.8)(B, Sq, D)),
            "k_cache": _w((lambda *s: torch.randn(*s, dtype=torch.bfloat16) * 0.8)(B, H, Sk, Dh)),
            "v_cache": _w((lambda *s: torch.randn(*s, dtype=torch.bfloat16) * 0.05)(B, H, Sk, Dh)),
            "wq": _w((lambda *s: torch.randn(*s, dtype=torch.bfloat16) * 0.8)(D, H * Dh) * (D ** -0.5)),
            "wo": _w((lambda *s: torch.randn(*s, dtype=torch.bfloat16) * 0.05)(H * Dh, D) * ((H * Dh) ** -0.5)),
        }
    _A_in = _A_setup()

    def _B_setup():
        B, Sq, D = 8, 128, 512
        Hq, Hkv, Sk, Dh = 32, 32, 1024, 128
        assert Hq % Hkv == 0, (Hq, Hkv)
        return {
            "x": _w((lambda *s: torch.randn(*s, dtype=torch.bfloat16) * 0.8)(B, Sq, D)),
            "k_cache": _w((lambda *s: torch.randn(*s, dtype=torch.bfloat16) * 0.8)(B, Hkv, Sk, Dh)),
            "v_cache": _w((lambda *s: torch.randn(*s, dtype=torch.bfloat16) * 0.05)(B, Hkv, Sk, Dh)),
            "wq": _w((lambda *s: torch.randn(*s, dtype=torch.bfloat16) * 0.8)(D, Hq * Dh) * (D ** -0.5)),
            "wo": _w((lambda *s: torch.randn(*s, dtype=torch.bfloat16) * 0.05)(Hq * Dh, D) * ((Hq * Dh) ** -0.5)),
        }
    _B_in = _B_setup()

    return {
        "A_x": _A_in["x"],
        "A_k_cache": _A_in["k_cache"],
        "A_v_cache": _A_in["v_cache"],
        "A_wq": _A_in["wq"],
        "A_wo": _A_in["wo"],
        "B_x": _B_in["x"],
        "B_k_cache": _B_in["k_cache"],
        "B_v_cache": _B_in["v_cache"],
        "B_wq": _B_in["wq"],
        "B_wo": _B_in["wo"],
    }

def reference(A_x, A_k_cache, A_v_cache, A_wq, A_wo, B_x, B_k_cache, B_v_cache, B_wq, B_wo):
    def _A_ref(x, k_cache, v_cache, wq, wo):
        B, Sq, D = x.shape
        H, Dh = 32, 128
        q = (lambda x, *d: x.permute(*d))((x @ wq).reshape(B, Sq, H, Dh), 0, 2, 1, 3)
        scores = torch.einsum("bhqd,bhkd->bhqk", q, k_cache) * (Dh ** -0.5)
        p = _softmax(scores, axis=-1)
        o = torch.einsum("bhqk,bhkd->bhqd", p, v_cache)
        return (lambda x, *d: x.permute(*d))(o, 0, 2, 1, 3).reshape(B, Sq, H * Dh) @ wo

    def _B_ref(x, k_cache, v_cache, wq, wo):
        B, Sq, D = x.shape
        Hq, Dh = 32, 128
        Hkv = k_cache.shape[1]
        rep = Hq // Hkv
        q = (lambda x, *d: x.permute(*d))((x @ wq).reshape(B, Sq, Hq, Dh), 0, 2, 1, 3)
        k = (lambda x, n, axis: torch.repeat_interleave(x, n, dim=axis))(k_cache, rep, axis=1)
        v = (lambda x, n, axis: torch.repeat_interleave(x, n, dim=axis))(v_cache, rep, axis=1)
        scores = torch.einsum("bhqd,bhkd->bhqk", q, k) * (Dh ** -0.5)
        p = _softmax(scores, axis=-1)
        o = torch.einsum("bhqk,bhkd->bhqd", p, v)
        return (lambda x, *d: x.permute(*d))(o, 0, 2, 1, 3).reshape(B, Sq, Hq * Dh) @ wo

    a = _A_ref(A_x, A_k_cache, A_v_cache, A_wq, A_wo)
    b = _B_ref(B_x, B_k_cache, B_v_cache, B_wq, B_wo)
    return torch.concatenate([a, b], axis=-1)
```

```python
import re
class Asm:
    def __init__(self):
        self.L = []
        self.lds = []
        self.vm = []
        self.nvm = 0
    def __call__(self, s):
        self.L.append("    " + s)
    def label(self, s):
        self.L.append(s + ":")
    def raw(self, s):
        self.L.append(s)
    def c(self, s):
        self.L.append("    ; " + s)
    def ds(self, s, dst=()):
        self(s)
        self.lds.append(set(dst))
    def need(self, regs):
        regs = set(regs)
        last = -1
        for i, d in enumerate(self.lds):
            if d & regs: last = i
        if last >= 0:
            n = len(self.lds) - 1 - last
            self(f"s_waitcnt lgkmcnt({min(n,14)})")
            self.lds = self.lds[last + 1:] if n <= 14 else self.lds[len(self.lds)-14:]
    def lgkm0(self):
        self("s_waitcnt lgkmcnt(0)")
        self.lds = []
    def vmem(self, s, tag):
        self(s)
        self.vm.append(tag); self.nvm += 1
    def vm_count_for(self, tags):
        tags = set(tags)
        last = -1
        for i, t in enumerate(self.vm):
            if t in tags: last = i
        n = len(self.vm) - 1 - last
        return n, last
    def vm_wait(self, tags, also_lgkm0=False):
        n, last = self.vm_count_for(tags)
        assert n <= 62
        if last >= 0:
            if also_lgkm0:
                self(f"s_waitcnt vmcnt({n}) lgkmcnt(0)"); self.lds = []
            else:
                self(f"s_waitcnt vmcnt({n})")
            self.vm = self.vm[last + 1:]
        elif also_lgkm0:
            self.lgkm0()
    def text(self):
        return "\n".join(self.L) + "\n"

def vr(a, n):
    return f"v[{a}:{a+n-1}]" if n > 1 else f"v{a}"
def sr(a, n):
    return f"s[{a}:{a+n-1}]" if n > 1 else f"s{a}"
def rng(a, n):
    return range(a, a + n)
```

```python
import sys, math
sys.path.insert(0, "gen")
from emit import *
KN = "concat_heads__mha_block_cached__gqa_block_cached__near_ridge"

class Cfg:
    nt_kv = True
    nt_xw = False
    stamp = False
cfg = Cfg()

MFMA = "v_mfma_f32_32x32x16_bf16"
KA = 0
VA = 8
VOK0, VOK1, VOV = 12, 13, 14
LSUM = 15
MX = 16; T1 = 17; T2 = 18; T3 = 19
LANE = 20; VOW = 21; VOX = 22; VOST = 23
VF = 24
OACC = 56
XR = 120
QF = 120
KF = 152
SB = [184, 200]
NEGM = 216
PB = 232
WA = 248
S_K, S_V, S_X, S_W, S_O = 32, 36, 40, 44, 48
S_WV, S_BR, S_H, S_B, S_W2K, S_OFFK, S_OFFV, S_CNT, S_T0, S_THR, S_SC, S_T1 = 52, 53, 54, 55, 56, 57, 58, 59, 60, 61, 62, 63
S_ST = 64

def load_kernargs(a):
    a("s_load_dwordx16 s[4:19], s[0:1], 0")
    a("s_load_dwordx4 s[20:23], s[0:1], 64")
    a("s_load_dwordx4 s[24:27], s[0:1], 80")
    a("s_load_dwordx2 s[28:29], s[0:1], 96")

def srd(a, d, plo, off_sgpr, nbytes):
    a(f"s_add_u32 s{d}, s{plo}, s{off_sgpr}")
    a(f"s_addc_u32 s{d+1}, s{plo+1}, 0")
    a(f"s_mov_b32 s{d+2}, {nbytes}")
    a(f"s_mov_b32 s{d+3}, 0x20000")

def interleave(a, mfmas, fillers):
    for i, m in enumerate(mfmas):
        m()
        if i < len(fillers):
            for f in fillers[i]: f()

def dma_kv(a, n):
    slot = n % 8
    isK = (n < 18) or (n % 2 == 1)
    fl = " nt" if cfg.nt_kv else ""
    ops = []
    if isK:
        ops.append(lambda: a(f"s_add_u32 m0, s{S_W2K}, {slot*8192}"))
        ops.append(lambda: (a("s_nop 0"), a.vmem(f"buffer_load_dwordx4 v{VOK0}, {sr(S_K,4)}, s{S_OFFK} offen{fl} lds", n)))
        ops.append(lambda: a.vmem(f"buffer_load_dwordx4 v{VOK1}, {sr(S_K,4)}, s{S_OFFK} offen offset:1024{fl} lds", n))
        ops.append(lambda: a(f"s_add_u32 s{S_OFFK}, s{S_OFFK}, 8192"))
    else:
        ops.append(lambda: a(f"s_add_u32 m0, s{S_W2K}, {slot*8192}"))
        ops.append(lambda: (a("s_nop 0"), a.vmem(f"buffer_load_dwordx4 v{VOV}, {sr(S_V,4)}, s{S_OFFV} offen{fl} lds", n)))
        ops.append(lambda: a.vmem(f"buffer_load_dwordx4 v{VOV}, {sr(S_V,4)}, s{S_OFFV} offen offset:1024{fl} lds", n))
        ops.append(lambda: a(f"s_add_u32 s{S_OFFV}, s{S_OFFV}, 8192"))
    return ops

def dma_w(a, t):
    slot = t % 8
    fl = " nt" if cfg.nt_xw else ""
    a(f"s_add_u32 m0, s{S_W2K}, {slot*8192}")
    a(f"s_mov_b32 s{S_T0}, {t*32*8192}")
    a.vmem(f"buffer_load_dwordx4 v{VOW}, {sr(S_W,4)}, s{S_T0} offen{fl} lds", t)
    a(f"s_add_u32 m0, s{S_W2K}, {slot*8192+1024}")
    a(f"s_mov_b32 s{S_T0}, {t*32*8192+4*8192}")
    a.vmem(f"buffer_load_dwordx4 v{VOW}, {sr(S_W,4)}, s{S_T0} offen{fl} lds", t)

def kread(a, slot, s):
    return lambda: a.ds(f"ds_read_b128 {vr(KF+4*s,4)}, v{KA+s} offset:{slot*8192}", rng(KF+4*s, 4))
def vread(a, slot, sp, db, p):
    r = VF + 4*(4*sp+db) + 2*p
    return lambda: a.ds(f"ds_read_b64_tr_b16 {vr(r,2)}, v{VA+db} offset:{slot*8192 + (16*sp+8*p)*256}", rng(r, 2))

def qk_mfmas(a, sbuf, first_c):
    ms = []
    for s in range(8):
        def m(s=s):
            a.need(rng(KF+4*s, 4))
            c = first_c if s == 0 else vr(sbuf, 16)
            a(f"{MFMA} {vr(sbuf,16)}, {vr(KF+4*s,4)}, {vr(QF+4*s,4)}, {c}")
        ms.append(m)
    return ms
def pv_mfmas(a):
    ms = []
    for sp in range(2):
        for db in range(4):
            def m(sp=sp, db=db):
                f = VF + 4*(4*sp+db)
                a.need(rng(f, 4))
                a(f"{MFMA} {vr(OACC+16*db,16)}, {vr(f,4)}, {vr(PB+4*sp,4)}, {vr(OACC+16*db,16)}")
            ms.append(m)
    return ms

def max16(a, sb):
    ops = [lambda: a(f"v_max3_f32 v{MX}, v{sb}, v{sb+1}, v{sb+2}")]
    for i in range(3, 15, 2):
        ops.append(lambda i=i: a(f"v_max3_f32 v{MX}, v{MX}, v{sb+i}, v{sb+i+1}"))
    ops.append(lambda: a(f"v_max_f32 v{MX}, v{MX}, v{sb+15}"))
    return ops

def spread(nslots, *lists):
    out = [[] for _ in range(nslots)]
    for (lst, lo, hi) in lists:
        n = len(lst)
        for i, x in enumerate(lst):
            g = lo + (i * (hi - lo)) // n
            out[g].append(x)
    return out

rare_id = [0]
rare_blocks = []
def body(a, j, do_dma=True, do_qk=True, do_kread=True, vmwait=8):
    cur = SB[j & 1]; nxt = SB[(j + 1) & 1]
    vslot = (18 + 2*j) % 8; kslot = (19 + 2*j) % 8
    a.c(f"---- body phase {j}")
    a(f"s_waitcnt vmcnt({vmwait}) lgkmcnt(0)"); a.lds = []
    a("s_barrier")
    vreads = [vread(a, vslot, sp, db, p) for sp in range(2) for db in range(4) for p in range(2)]
    exps = [lambda i=i: a(f"v_exp_f32 v{cur+i}, v{cur+i}") for i in range(16)]
    cvts = [lambda i=i: a(f"v_cvt_pk_bf16_f32 v{PB+i}, v{cur+2*i}, v{cur+2*i+1}") for i in range(8)]
    dmas = (dma_kv(a, 24 + 2*j) + dma_kv(a, 25 + 2*j)) if do_dma else []
    if do_qk:
        ms = qk_mfmas(a, nxt, vr(NEGM, 16))
        val = [[exps[0], exps[1], exps[2]], [exps[3], exps[4], cvts[0]], [exps[5], exps[6], cvts[1]], [exps[7], exps[8], cvts[2]],
               [exps[9], exps[10], cvts[3]], [exps[11], exps[12], cvts[4]], [exps[13], exps[14], cvts[5]], [exps[15], cvts[6]]]
        rd = spread(8, (vreads, 0, 6))
        dm = spread(8, (dmas, 1, 8)) if dmas else [[] for _ in range(8)]
        fill = [rd[g] + val[g] + dm[g] for g in range(8)]
        interleave(a, ms, fill)
        cvts[7]()
    else:
        for v in vreads: v()
        for e in exps: e()
        a("s_nop 0")
        for c in cvts: c()
        a("s_nop 1")
    kreads = [kread(a, kslot, s) for s in range(8)] if do_kread else []
    adds = [lambda i=i: a(f"v_add_f32 v{LSUM}, v{LSUM}, v{cur+i}") for i in range(16)]
    mxs = max16(a, nxt) if do_qk else []
    ms = pv_mfmas(a)
    rd = spread(8, (kreads, 0, 4)) if kreads else [[] for _ in range(8)]
    val = spread(8, (adds, 0, 5), (mxs, 5, 8)) if mxs else spread(8, (adds, 0, 8))
    fill = [rd[g] + val[g] for g in range(8)]
    interleave(a, ms, fill)
    if do_qk:
        rid = rare_id[0]; rare_id[0] += 1
        a(f"v_cmp_lt_f32 vcc, s{S_THR}, v{MX}")
        a(f"s_cbranch_vccnz L_rare{rid}")
        a.label(f"L_back{rid}")
        rare_blocks.append((rid, nxt))

def rare(a, rid, sb):
    a.label(f"L_rare{rid}")
    a(f"v_mov_b32 v{T1}, v{MX}")
    a("s_nop 1")
    a(f"v_permlane32_swap_b32 v{T1}, v{MX}")
    a("s_nop 1")
    a(f"v_max3_f32 v{MX}, v{MX}, v{T1}, 0")
    a(f"v_exp_f32 v{T2}, -v{MX}")
    a(f"v_sub_f32 v{NEGM}, v{NEGM}, v{MX}")
    for i in range(16): a(f"v_sub_f32 v{sb+i}, v{sb+i}, v{MX}")
    for i in range(1, 16): a(f"v_mov_b32 v{NEGM+i}, v{NEGM}")
    a(f"v_mul_f32 v{LSUM}, v{LSUM}, v{T2}")
    for i in range(64): a(f"v_mul_f32 v{OACC+i}, v{OACC+i}, v{T2}")
    a(f"s_branch L_back{rid}")

def gen_attn(a):
    a.raw(".p2align 8"); a.raw(".type attn_kernel,@function"); a.label("attn_kernel")
    a("s_cmp_ge_u32 s2, 512"); a("s_cbranch_scc1 L_attn_end")
    load_kernargs(a)
    a(f"v_lshrrev_b32 v{T1}, 6, v0")
    a(f"v_and_b32 v{LANE}, 63, v0")
    a(f"v_readfirstlane_b32 s{S_WV}, v{T1}")
    a(f"s_lshr_b32 s{S_BR}, s2, 8")
    a(f"s_and_b32 s{S_T0}, s2, 7")
    a(f"s_lshr_b32 s{S_T1}, s2, 3"); a(f"s_and_b32 s{S_T1}, s{S_T1}, 31")
    a(f"s_lshl_b32 s{S_H}, s{S_T0}, 2"); a(f"s_and_b32 s{S_T0}, s{S_T1}, 3"); a(f"s_add_u32 s{S_H}, s{S_H}, s{S_T0}")
    a(f"s_lshr_b32 s{S_B}, s{S_T1}, 2")
    a(f"s_lshl_b32 s{S_W2K}, s{S_WV}, 11")
    a(f"v_lshrrev_b32 v{T1}, 4, v{LANE}")
    a(f"v_and_b32 v{T2}, 15, v{LANE}")
    a(f"v_lshlrev_b32 v{T3}, 2, v{T1}")
    a(f"v_xor_b32 v{T3}, v{T3}, v{T2}")
    a(f"v_lshlrev_b32 v{T3}, 4, v{T3}")
    a(f"v_lshl_add_u32 v{VOV}, v{T1}, 8, v{T3}")
    a(f"v_lshl_add_u32 v{VOW}, v{T1}, 13, v{T3}")
    a(f"s_lshl_b32 s{S_T0}, s{S_WV}, 16")
    a(f"v_add_u32 v{VOW}, s{S_T0}, v{VOW}")
    a(f"s_and_b32 s{S_T0}, s{S_WV}, 1"); a(f"s_lshl_b32 s{S_T0}, s{S_T0}, 3")
    a(f"v_add_u32 v{T3}, s{S_T0}, v{T1}")
    a(f"v_xor_b32 v{VOK0}, v{T3}, v{T2}")
    a(f"v_xor_b32 v{VOK1}, 4, v{VOK0}")
    a(f"v_lshlrev_b32 v{VOK0}, 4, v{VOK0}"); a(f"v_lshlrev_b32 v{VOK1}, 4, v{VOK1}")
    a(f"v_lshl_add_u32 v{VOK0}, v{T1}, 8, v{VOK0}"); a(f"v_lshl_add_u32 v{VOK1}, v{T1}, 8, v{VOK1}")
    a(f"v_and_b32 v{T3}, 31, v{LANE}")
    a(f"v_lshrrev_b32 v{MX}, 5, v{LANE}")
    a(f"v_lshlrev_b32 v{VOX}, 10, v{T3}")
    a(f"v_lshl_add_u32 v{VOX}, v{MX}, 4, v{VOX}")
    a(f"s_lshl_b32 s{S_T0}, s{S_WV}, 15")
    a(f"v_add_u32 v{VOX}, s{S_T0}, v{VOX}")
    a(f"v_xor_b32 v{KA}, v{MX}, v{T2}")
    a(f"v_lshlrev_b32 v{KA}, 4, v{KA}")
    a(f"v_lshl_add_u32 v{KA}, v{T3}, 8, v{KA}")
    for s in range(1, 8): a(f"v_xor_b32 v{KA+s}, {s<<5}, v{KA}")
    a(f"v_lshrrev_b32 v{T2}, 2, v{T2}")
    a(f"v_and_b32 v{T1}, 1, v{T1}")
    a(f"v_lshlrev_b32 v{T1}, 5, v{T1}")
    a(f"v_lshl_add_u32 v{T1}, v{T2}, 8, v{T1}")
    a(f"v_lshl_add_u32 v{T1}, v{T2}, 6, v{T1}")
    a(f"v_and_b32 v{T3}, 3, v{LANE}")
    a(f"v_lshl_add_u32 v{VA}, v{T3}, 3, v{T1}")
    a(f"v_lshl_add_u32 v{VA}, v{MX}, 10, v{VA}")
    a(f"v_and_b32 v{T2}, 1, v{T3}"); a(f"v_lshlrev_b32 v{T2}, 4, v{T2}")
    a(f"v_lshrrev_b32 v{T3}, 1, v{T3}"); a(f"v_lshl_add_u32 v{T2}, v{T3}, 3, v{T2}")
    a(f"v_add_u32 v{WA}, v{T2}, v{T1}")
    a(f"v_lshl_add_u32 v{WA}, v{MX}, 11, v{WA}")
    for db in range(1, 4):
        a(f"v_xor_b32 v{VA+db}, {db<<6}, v{VA}"); a(f"v_xor_b32 v{WA+db}, {db<<6}, v{WA}")
    a(f"v_lshlrev_b32 v{VOST}, 4, v{LANE}")
    a("s_waitcnt lgkmcnt(0)")
    if cfg.stamp: a(f"s_memrealtime {sr(S_ST,2)}")
    a(f"s_cmp_eq_u32 s{S_BR}, 0")
    for i in range(5): a(f"s_cselect_b64 {sr(4+2*i,2)}, {sr(4+2*i,2)}, {sr(14+2*i,2)}")
    a(f"s_lshl_b32 s{S_T0}, s{S_B}, 17"); srd(a, S_X, 4, S_T0, 131072)
    a(f"s_lshl_b32 s{S_T0}, s{S_H}, 8"); srd(a, S_W, 10, S_T0, 0)
    a(f"s_sub_u32 s{S_W+2}, {512*8192}, s{S_T0}")
    a(f"s_lshl_b32 s{S_T0}, s{S_B}, 5"); a(f"s_add_u32 s{S_T0}, s{S_T0}, s{S_H}"); a(f"s_lshl_b32 s{S_T0}, s{S_T0}, 18")
    srd(a, S_K, 6, S_T0, 262144); srd(a, S_V, 8, S_T0, 262144)
    a(f"s_lshl_b32 s{S_T0}, s{S_BR}, 3"); a(f"s_add_u32 s{S_T0}, s{S_T0}, s{S_B}"); a(f"s_lshl_b32 s{S_T0}, s{S_T0}, 2")
    a(f"s_add_u32 s{S_T0}, s{S_T0}, s{S_WV}"); a(f"s_lshl_b32 s{S_T0}, s{S_T0}, 5"); a(f"s_add_u32 s{S_T0}, s{S_T0}, s{S_H}")
    a(f"s_lshl_b32 s{S_T0}, s{S_T0}, 13")
    srd(a, S_O, 28, S_T0, 8192)
    a(f"s_mov_b32 s{S_OFFK}, s{S_W2K}"); a(f"s_mov_b32 s{S_OFFV}, s{S_W2K}")
    a(f"s_mov_b32 s{S_THR}, 0x41000000")
    sc = math.log2(math.e) / math.sqrt(128.0)
    import struct
    a(f"s_mov_b32 s{S_SC}, 0x{struct.unpack('<I', struct.pack('<f', sc))[0]:08x}")
    flx = " nt" if cfg.nt_xw else ""
    def xload(s):
        a.vmem(f"buffer_load_dwordx4 {vr(XR+4*s,4)}, v{VOX}, {sr(S_X,4)}, 0 offen offset:{s*32}{flx}", ("x", s))
    for t in range(8):
        dma_w(a, t); xload(2*t); xload(2*t+1)
    for s in range(16, 32): xload(s)
    def wread(t, sp, db, p):
        r = VF + 4*(4*sp+db) + 2*p
        return lambda: a.ds(f"ds_read_b64_tr_b16 {vr(r,2)}, v{WA+db} offset:{(t%8)*8192 + (16*sp+4*p)*256}", rng(r, 2))
    def wm(t, sp):
        ms = []
        for db in range(4):
            def m(db=db):
                f = VF + 4*(4*sp+db)
                a.need(rng(f, 4))
                c = "0" if (t == 0 and sp == 0) else vr(OACC+16*db, 16)
                a(f"{MFMA} {vr(OACC+16*db,16)}, {vr(f,4)}, {vr(XR+4*(2*t+sp),4)}, {c}")
            ms.append(m)
        return ms
    a.vm_wait([0]); a("s_barrier")
    for db in range(4):
        for p in range(2): wread(0, 0, db, p)()
    for t in range(16):
        a.c(f"qproj step {t}")
        a.vm_wait([("x", 2*t)])
        rd = [wread(t, 1, db, p) for db in range(4) for p in range(2)]
        interleave(a, wm(t, 0), spread(4, (rd, 0, 3)))
        tags = [("x", 2*t+1)] + ([t+1] if t < 15 else [])
        a.vm_wait(tags, also_lgkm0=True)
        a("s_barrier")
        rd = [wread(t+1, 0, db, p) for db in range(4) for p in range(2)] if t < 15 else []
        n = t + 8
        if n < 16: dm = [lambda n=n: dma_w(a, n)]
        else: dm = dma_kv(a, n)
        interleave(a, wm(t, 1), spread(4, (rd, 0, 3), (dm, 1, 4)) if rd else spread(4, (dm, 0, 4)))
    a.vm_wait([16, 17]); a("s_barrier")
    for s in range(8): kread(a, 16 % 8, s)()
    a("s_nop 7")
    for db in range(4):
        for i in range(16): a(f"v_mul_f32 v{OACC+16*db+i}, s{S_SC}, v{OACC+16*db+i}")
        for i in range(8): a(f"v_cvt_pk_bf16_f32 v{QF+8*db+i}, v{OACC+16*db+2*i}, v{OACC+16*db+2*i+1}")
    for i in range(64): a(f"v_mov_b32 v{OACC+i}, 0")
    a(f"v_mov_b32 v{LSUM}, 0")
    for m in qk_mfmas(a, SB[0], "0"): m()
    for s in range(8): kread(a, 17 % 8, s)()
    a("s_nop 7")
    for m in max16(a, SB[0]): m()
    a(f"v_mov_b32 v{T1}, v{MX}")
    a("s_nop 1")
    a(f"v_permlane32_swap_b32 v{T1}, v{MX}")
    a("s_nop 1")
    a(f"v_max_f32 v{MX}, v{MX}, v{T1}")
    for i in range(16): a(f"v_sub_f32 v{SB[0]+i}, v{SB[0]+i}, v{MX}")
    for i in range(16): a(f"v_sub_f32 v{NEGM+i}, 0, v{MX}")
    if cfg.stamp: a(f"s_memrealtime {sr(S_ST+2,2)}")
    a(f"s_mov_b32 s{S_CNT}, 7")
    a.raw(".p2align 3")
    a.label("L_loop")
    for j in range(4): body(a, j)
    a(f"s_sub_u32 s{S_CNT}, s{S_CNT}, 1"); a(f"s_cmp_lg_u32 s{S_CNT}, 0"); a("s_cbranch_scc1 L_loop")
    body(a, 0, do_dma=True, vmwait=8)
    body(a, 1, do_dma=False, vmwait=8)
    body(a, 2, do_dma=False, do_kread=False, vmwait=6)
    body(a, 3, do_dma=False, do_qk=False, do_kread=False, vmwait=2)
    a(f"v_mov_b32 v{T1}, v{LSUM}")
    a("s_nop 1")
    a(f"v_permlane32_swap_b32 v{T1}, v{LSUM}")
    a("s_nop 1")
    a(f"v_add_f32 v{LSUM}, v{LSUM}, v{T1}")
    a(f"v_rcp_f32 v{T2}, v{LSUM}")
    a("s_nop 7")
    for db in range(4):
        for i in range(16): a(f"v_mul_f32 v{OACC+16*db+i}, v{OACC+16*db+i}, v{T2}")
        for i in range(8): a(f"v_cvt_pk_bf16_f32 v{QF+8*db+i}, v{OACC+16*db+2*i}, v{OACC+16*db+2*i+1}")
        for sp in range(2):
            ks = 2*db + sp
            if ks < 4: a(f"buffer_store_dwordx4 {vr(QF+4*ks,4)}, v{VOST}, {sr(S_O,4)}, 0 offen offset:{ks*1024}")
            else:
                a(f"s_movk_i32 s{S_T0}, 4096")
                a(f"buffer_store_dwordx4 {vr(QF+4*ks,4)}, v{VOST}, {sr(S_O,4)}, s{S_T0} offen offset:{(ks-4)*1024}")
    if cfg.stamp:
        a("s_waitcnt vmcnt(0)")
        a(f"s_memrealtime {sr(S_ST+4,2)}")
        a(f"s_getreg_b32 s{S_ST+6}, hwreg(HW_REG_XCC_ID)")
        a("s_waitcnt lgkmcnt(0)")
        a(f"s_add_u32 s28, s28, 0x2000000"); a("s_addc_u32 s29, s29, 0"); a("s_mov_b32 s30, 0x100000"); a("s_mov_b32 s31, 0x20000")
        a(f"v_mov_b32 v4, s{S_ST}"); a(f"v_mov_b32 v5, s{S_ST+2}"); a(f"v_mov_b32 v6, s{S_ST+4}"); a(f"v_mov_b32 v7, s{S_ST+6}")
        a(f"s_lshl_b32 s{S_T0}, s2, 2"); a(f"s_add_u32 s{S_T0}, s{S_T0}, s{S_WV}"); a(f"s_lshl_b32 s{S_T0}, s{S_T0}, 4"); a(f"v_mov_b32 v3, s{S_T0}")
        a(f"v_cmp_eq_u32 vcc, 0, v{LANE}"); a("s_and_saveexec_b64 s[72:73], vcc")
        a("buffer_store_dwordx4 v[4:7], v3, s[28:31], 0 offen")
    a.label("L_attn_end")
    a("s_endpgm")
    for rid, sb in rare_blocks: rare(a, rid, sb)

def gen_oproj(a):
    OB = [64, 128]; AF = 192; ACC = 224
    VLANE, VOO, VOWO, VWA, VT1, VT2, VT3, VOUT = 1, 2, 3, 4, 5, 6, 7, 8
    S_WO, S_OO, S_OUT = 32, 36, 40
    S_WV, S_BR, S_B, S_QH, S_NT, S_T0, S_T1, S_LB = 52, 53, 54, 55, 56, 57, 58, 59
    a.raw(".p2align 8"); a.raw(".type oproj_kernel,@function"); a.label("oproj_kernel")
    a("s_cmp_ge_u32 s2, 512"); a("s_cbranch_scc1 L_op_end")
    load_kernargs(a)
    a(f"v_lshrrev_b32 v{VT1}, 6, v0")
    a(f"v_and_b32 v{VLANE}, 63, v0")
    a(f"v_readfirstlane_b32 s{S_WV}, v{VT1}")
    a(f"s_lshr_b32 s{S_BR}, s2, 8")
    a(f"s_and_b32 s{S_T0}, s2, 7")
    a(f"s_lshr_b32 s{S_T1}, s2, 3"); a(f"s_and_b32 s{S_T1}, s{S_T1}, 31")
    a(f"s_and_b32 s{S_B}, s{S_T0}, 6"); a(f"s_and_b32 s{S_QH}, s{S_T1}, 1"); a(f"s_add_u32 s{S_B}, s{S_B}, s{S_QH}")
    a(f"s_lshr_b32 s{S_QH}, s{S_T1}, 1"); a(f"s_and_b32 s{S_QH}, s{S_QH}, 1")
    a(f"s_and_b32 s{S_NT}, s{S_T0}, 1"); a(f"s_lshl_b32 s{S_NT}, s{S_NT}, 3"); a(f"s_lshr_b32 s{S_T1}, s{S_T1}, 2"); a(f"s_add_u32 s{S_NT}, s{S_NT}, s{S_T1}")
    a(f"s_lshl_b32 s{S_LB}, s{S_WV}, 14")
    a(f"v_lshlrev_b32 v{VOO}, 4, v{VLANE}")
    a(f"v_lshrrev_b32 v{VT1}, 2, v{VLANE}"); a(f"v_and_b32 v{VT2}, 3, v{VLANE}")
    a(f"v_lshlrev_b32 v{VOWO}, 10, v{VT1}"); a(f"v_lshl_add_u32 v{VOWO}, v{VT2}, 4, v{VOWO}")
    a(f"v_and_b32 v{VT1}, 3, v{VT1}")
    a(f"v_lshlrev_b32 v{VWA}, 6, v{VT1}")
    a(f"v_lshl_add_u32 v{VWA}, v{VT2}, 3, v{VWA}")
    a(f"v_lshrrev_b32 v{VT1}, 4, v{VLANE}"); a(f"v_and_b32 v{VT1}, 1, v{VT1}")
    a(f"v_lshl_add_u32 v{VWA}, v{VT1}, 5, v{VWA}")
    a(f"v_lshrrev_b32 v{VT3}, 5, v{VLANE}")
    a(f"v_lshl_add_u32 v{VWA}, v{VT3}, 8, v{VWA}")
    a(f"v_add_u32 v{VWA}, s{S_LB}, v{VWA}")
    a(f"v_and_b32 v{VT1}, 31, v{VLANE}"); a(f"v_lshlrev_b32 v{VOUT}, 11, v{VT1}"); a(f"v_lshl_add_u32 v{VOUT}, v{VT3}, 4, v{VOUT}")
    a("s_waitcnt lgkmcnt(0)")
    a(f"s_cmp_eq_u32 s{S_BR}, 0")
    a(f"s_cselect_b64 s[12:13], s[12:13], s[22:23]")
    a(f"s_lshl_b32 s{S_T0}, s{S_NT}, 6"); a(f"s_lshl_b32 s{S_T1}, s{S_WV}, 17"); a(f"s_add_u32 s{S_T0}, s{S_T0}, s{S_T1}")
    srd(a, S_WO, 12, S_T0, 0); a(f"s_sub_u32 s{S_WO+2}, {4096*1024}, s{S_T0}")
    a(f"s_lshl_b32 s{S_T0}, s{S_BR}, 3"); a(f"s_add_u32 s{S_T0}, s{S_T0}, s{S_B}"); a(f"s_lshl_b32 s{S_T0}, s{S_T0}, 1")
    a(f"s_add_u32 s{S_T0}, s{S_T0}, s{S_QH}"); a(f"s_lshl_b32 s{S_T0}, s{S_T0}, 6"); a(f"s_add_u32 s{S_T0}, s{S_T0}, s{S_WV}")
    a(f"s_lshl_b32 s{S_T0}, s{S_T0}, 13")
    srd(a, S_OO, 28, S_T0, 2*32*8192)
    a(f"s_lshl_b32 s{S_T0}, s{S_B}, 2"); a(f"s_lshl_b32 s{S_T1}, s{S_QH}, 1"); a(f"s_add_u32 s{S_T0}, s{S_T0}, s{S_T1}")
    a(f"s_lshr_b32 s{S_T1}, s{S_WV}, 1"); a(f"s_add_u32 s{S_T0}, s{S_T0}, s{S_T1}"); a(f"s_lshl_b32 s{S_T0}, s{S_T0}, 16")
    a(f"s_lshl_b32 s{S_T1}, s{S_BR}, 10"); a(f"s_add_u32 s{S_T0}, s{S_T0}, s{S_T1}")
    a(f"s_lshl_b32 s{S_T1}, s{S_NT}, 6"); a(f"s_add_u32 s{S_T0}, s{S_T0}, s{S_T1}")
    a(f"s_and_b32 s{S_T1}, s{S_WV}, 1"); a(f"s_lshl_b32 s{S_T1}, s{S_T1}, 5"); a(f"s_add_u32 s{S_T0}, s{S_T0}, s{S_T1}")
    srd(a, S_OUT, 24, S_T0, 0); a(f"s_sub_u32 s{S_OUT+2}, {8*128*2048}, s{S_T0}")
    def issue(i):
        buf = i & 1
        for k in range(8):
            a(f"s_add_u32 m0, s{S_LB}, {buf*8192 + k*1024}")
            a(f"s_mov_b32 s{S_T0}, {(i*4*128 + k*16)*1024}")
            a.vmem(f"buffer_load_dwordx4 v{VOWO}, {sr(S_WO,4)}, s{S_T0} offen lds", ("h", i))
        for qb in range(2):
            for half in range(2):
                a(f"s_mov_b32 s{S_T0}, {(qb*32 + i*4)*8192 + half*4096}")
                for k in range(4):
                    ks = half*4 + k
                    a.vmem(f"buffer_load_dwordx4 {vr(OB[buf]+32*qb+4*ks,4)}, v{VOO}, {sr(S_OO,4)}, s{S_T0} offen offset:{k*1024}", ("h", i))
    issue(0); issue(1)
    for i in range(8):
        buf = i & 1
        a.vm_wait([("h", i)])
        for ks in range(8):
            for p in range(2):
                r = AF + 4*ks + 2*p
                a.ds(f"ds_read_b64_tr_b16 {vr(r,2)}, v{VWA} offset:{buf*8192 + ks*1024 + p*512}", rng(r, 2))
        for ks in range(8):
            a.need(rng(AF+4*ks, 4))
            for qb in range(2):
                c = "0" if (i == 0 and ks == 0) else vr(ACC+16*qb, 16)
                a(f"{MFMA} {vr(ACC+16*qb,16)}, {vr(AF+4*ks,4)}, {vr(OB[buf]+32*qb+4*ks,4)}, {c}")
        if i + 2 < 8: issue(i + 2)
    a("s_nop 7"); a("s_nop 3")
    a(f"v_add_u32 v{VT1}, s{S_LB}, v{VOO}")
    for k in range(8): a.ds(f"ds_write_b128 v{VT1}, {vr(ACC+4*k,4)} offset:{k*1024}")
    a.lgkm0(); a("s_barrier")
    a(f"s_lshl_b32 s{S_T0}, s{S_WV}, 11")
    a(f"v_add_u32 v{VT1}, s{S_T0}, v{VOO}")
    for w in range(4):
        for k in range(2):
            r = 64 + 8*w + 4*k
            a.ds(f"ds_read_b128 {vr(r,4)}, v{VT1} offset:{w*16384 + k*1024}", rng(r, 4))
    a.lgkm0()
    for i in range(8): a(f"v_add_f32 v{64+i}, v{64+i}, v{72+i}")
    for i in range(8): a(f"v_add_f32 v{80+i}, v{80+i}, v{88+i}")
    for i in range(8): a(f"v_add_f32 v{64+i}, v{64+i}, v{80+i}")
    for i in range(4): a(f"v_cvt_pk_bf16_f32 v{100+i}, v{64+2*i}, v{64+2*i+1}")
    a("s_nop 1")
    a("v_permlane32_swap_b32 v100, v102"); a("v_permlane32_swap_b32 v101, v103")
    a("s_nop 1")
    a(f"buffer_store_dwordx4 v[100:103], v{VOUT}, {sr(S_OUT,4)}, 0 offen")
    a.label("L_op_end")
    a("s_endpgm")

def kd(a, name, nv=256, ns=96):
    a.raw(f".amdhsa_kernel {name}")
    for d in [f"next_free_vgpr {nv}", f"next_free_sgpr {ns}", f"accum_offset {nv}", "group_segment_fixed_size 0", "kernarg_size 104",
              "user_sgpr_count 2", "user_sgpr_kernarg_segment_ptr 1", "system_sgpr_workgroup_id_x 1"]:
        a.raw("  .amdhsa_" + d)
    a.raw(".end_amdhsa_kernel")

def gen(only=None):
    rare_id[0] = 0; rare_blocks.clear()
    a = Asm()
    if only != "oproj": a.raw("; @launch kernel=attn_kernel grid=(512,1,1) block=(256,1,1) lds=81920")
    if only != "attn": a.raw("; @launch kernel=oproj_kernel grid=(512,1,1) block=(256,1,1) lds=65536")
    a.raw('.amdgcn_target "amdgcn-amd-amdhsa--gfx950"'); a.raw(".text")
    a.raw(".globl attn_kernel"); a.raw(".globl oproj_kernel")
    gen_attn(a)
    a.lds = []; a.vm = []
    gen_oproj(a)
    a.raw('.section .rodata,"a"'); a.raw(".p2align 6"); kd(a, "attn_kernel"); a.raw(".p2align 6"); kd(a, "oproj_kernel")
    return a.text()

if __name__ == "__main__":
    open(f"cdna_kernels/{KN}.s", "w").write(gen())
    cfg.stamp = True
    open("k1_stamp.s", "w").write(gen())
    open("k1_attn_only.s", "w").write(gen("attn"))
    open("k1_oproj_only.s", "w").write(gen("oproj"))
```

```python
import sys, math, struct
sys.path.insert(0, "gen")
from emit import *
KN = "concat_heads__mha_block_cached__gqa_block_cached__near_ridge"

class Cfg:
    nt_kv = True
    nt_xw = False
    stamp = False
    ahead = 5
    rot = True
    touch = 0
cfg = Cfg()

MFMA = "v_mfma_f32_32x32x16_bf16"
KA = 0; VA = 8
VOK0, VOK1, VOV = 12, 13, 14
LSUM = 15
MX = 16; T1 = 17; T2 = 18; T3 = 19
LANE = 20; VOW = 21; VOX = 22; VOST = 23
VF = 24; OACC = 56; QF = 120; KF = 152
SB = [184, 200]; NEGM = 216; PB = 232
XF = [184, 200]
WA = 248
VOX1 = 252; XRA = 240
OB = [120, 184, 216]
S_K, S_V, S_X, S_W, S_O = 32, 36, 40, 44, 48
S_WV, S_BR, S_H, S_B, S_W2K, S_OFFK, S_OFFV, S_CNT, S_T0, S_THR, S_SC, S_T1 = 52, 53, 54, 55, 56, 57, 58, 59, 60, 61, 62, 63
S_ROT, S_T2, S_T3 = 30, 31, 3
S_RND, S_XQ, S_NB = 96, 97, 98
S_N0, S_N1 = 99, 100
S_XB = 101
WS_O = 0
WS_P = 0x1000000
WS_F = 0x1800000
FO_BYTES = 64 * 256
FP_OFF = FO_BYTES
EP_OFF = FP_OFF + 64 * 128
F_BYTES = EP_OFF + 128
TAGX = 0x5bd1e995
XBUF = [6 * 8192, 65536]

NST = 14
def stamp(a, k):
    if cfg.stamp: a(f"s_memrealtime {sr(64+2*k,2)}")
def cstamp(a, k):
    if cfg.stamp: a(f"s_memtime {sr(64+2*k,2)}")
def dump_stamps(a, lane, wv, t0, wsoff):
    if not cfg.stamp: return
    a("s_waitcnt vmcnt(0)")
    stamp(a, NST-1); cstamp(a, 12)
    a(f"s_getreg_b32 s92, hwreg(HW_REG_XCC_ID)"); a(f"s_getreg_b32 s93, hwreg(HW_REG_HW_ID)")
    a("s_waitcnt lgkmcnt(0)")
    a(f"s_add_u32 s28, s28, {wsoff}"); a("s_addc_u32 s29, s29, 0"); a("s_mov_b32 s30, 0x100000"); a("s_mov_b32 s31, 0x20000")
    for k in range(NST): a(f"v_mov_b32 v{32+k}, s{64+2*k}")
    a("v_mov_b32 v46, s92"); a("v_mov_b32 v47, s93")
    a(f"s_lshl_b32 s{t0}, s2, 2"); a(f"s_add_u32 s{t0}, s{t0}, s{wv}"); a(f"s_lshl_b32 s{t0}, s{t0}, 6"); a(f"v_mov_b32 v30, s{t0}")
    a(f"v_cmp_eq_u32 vcc, 0, v{lane}"); a("s_and_saveexec_b64 s[94:95], vcc")
    for k in range(4): a(f"buffer_store_dwordx4 v[{32+4*k}:{35+4*k}], v30, s[28:31], 0 offen offset:{16*k}")
def zero_stamps(a):
    if cfg.stamp:
        for k in range(NST): a(f"s_mov_b64 {sr(64+2*k,2)}, 0")

def srd(a, d, plo, off_sgpr, nbytes):
    a(f"s_add_u32 s{d}, s{plo}, s{off_sgpr}")
    a(f"s_addc_u32 s{d+1}, s{plo+1}, 0")
    a(f"s_mov_b32 s{d+2}, {nbytes}")
    a(f"s_mov_b32 s{d+3}, 0x20000")

def interleave(a, mfmas, fillers):
    for i, m in enumerate(mfmas):
        m()
        if i < len(fillers):
            for f in fillers[i]: f()

def spread(nslots, *lists):
    out = [[] for _ in range(nslots)]
    for (lst, lo, hi) in lists:
        n = len(lst)
        for i, x in enumerate(lst):
            out[lo + (i * (hi - lo)) // n].append(x)
    return out

def dma_kv(a, n):
    slot = n % 8
    isK = (n < 18) or (n % 2 == 1)
    fl = " nt" if cfg.nt_kv else ""
    v0, v1, s, so = (VOK0, VOK1, S_K, S_OFFK) if isK else (VOV, VOV, S_V, S_OFFV)
    return [lambda: (a(f"s_add_u32 m0, s{S_W2K}, {slot*8192}"), a("s_nop 0"),
                     a.vmem(f"buffer_load_dwordx4 v{v0}, {sr(s,4)}, s{so} offen{fl} lds", n)),
            lambda: (a.vmem(f"buffer_load_dwordx4 v{v1}, {sr(s,4)}, s{so} offen offset:1024{fl} lds", n),
                     a(f"s_add_u32 s{so}, s{so}, 8192"))]

def kread(a, slot, s):
    return lambda: a.ds(f"ds_read_b128 {vr(KF+4*s,4)}, v{KA+s} offset:{slot*8192}", rng(KF+4*s, 4))
def vread(a, slot, sp, db, p, base=VF):
    r = base + 4*(4*sp+db) + 2*p
    return lambda: a.ds(f"ds_read_b64_tr_b16 {vr(r,2)}, v{VA+db} offset:{slot*8192 + (16*sp+8*p)*256}", rng(r, 2))

def qk_mfmas(a, sbuf, first_c):
    ms = []
    for s in range(8):
        def m(s=s):
            a.need(rng(KF+4*s, 4))
            c = first_c if s == 0 else vr(sbuf, 16)
            a(f"{MFMA} {vr(sbuf,16)}, {vr(KF+4*s,4)}, {vr(QF+4*s,4)}, {c}")
        ms.append(m)
    return ms
def pv_mfmas(a, af=VF, bf=PB):
    ms = []
    for sp in range(2):
        for db in range(4):
            def m(sp=sp, db=db):
                f = af + 4*(4*sp+db)
                a.need(rng(f, 4))
                a(f"{MFMA} {vr(OACC+16*db,16)}, {vr(f,4)}, {vr(bf+4*sp,4)}, {vr(OACC+16*db,16)}")
            ms.append(m)
    return ms
def max16(a, sb):
    ops = [lambda: a(f"v_max3_f32 v{MX}, v{sb}, v{sb+1}, v{sb+2}")]
    for i in range(3, 15, 2):
        ops.append(lambda i=i: a(f"v_max3_f32 v{MX}, v{MX}, v{sb+i}, v{sb+i+1}"))
    ops.append(lambda: a(f"v_max_f32 v{MX}, v{MX}, v{sb+15}"))
    return ops

rare_id = [0]
rare_blocks = []
def body(a, j, dmas_n, vmwait, do_qk=True, do_kread=True):
    cur = SB[j & 1]; nxt = SB[(j + 1) & 1]
    vslot = (18 + 2*j) % 8; kslot = (19 + 2*j) % 8
    a.c(f"---- body phase {j}")
    a(f"s_waitcnt vmcnt({vmwait}) lgkmcnt(0)"); a.lds = []
    a("s_barrier")
    vreads = [vread(a, vslot, sp, db, p) for sp in range(2) for db in range(4) for p in range(2)]
    exps = [lambda i=i: a(f"v_exp_f32 v{cur+i}, v{cur+i}") for i in range(16)]
    cvts = [lambda i=i: a(f"v_cvt_pk_bf16_f32 v{PB+i}, v{cur+2*i}, v{cur+2*i+1}") for i in range(8)]
    dmas = []
    for n in dmas_n: dmas += dma_kv(a, n)
    if do_qk:
        ms = qk_mfmas(a, nxt, vr(NEGM, 16))
        val = [[exps[0], exps[1], exps[2]], [exps[3], exps[4], cvts[0]], [exps[5], exps[6], cvts[1]], [exps[7], exps[8], cvts[2]],
               [exps[9], exps[10], cvts[3]], [exps[11], exps[12], cvts[4]], [exps[13], exps[14], cvts[5]], [exps[15], cvts[6]]]
        rd = spread(8, (vreads, 0, 6))
        dm = spread(8, (dmas, 0, 4)) if dmas else [[] for _ in range(8)]
        fill = [dm[g] + rd[g] + val[g] for g in range(8)]
        interleave(a, ms, fill)
        cvts[7]()
    else:
        for v in vreads: v()
        for e in exps: e()
        a("s_nop 0")
        for c in cvts: c()
        a("s_nop 1")
    kreads = [kread(a, kslot, s) for s in range(8)] if do_kread else []
    adds = [lambda i=i: a(f"v_add_f32 v{LSUM}, v{LSUM}, v{cur+i}") for i in range(16)]
    mxs = max16(a, nxt) if do_qk else []
    ms = pv_mfmas(a)
    rd = spread(8, (kreads, 0, 4)) if kreads else [[] for _ in range(8)]
    val = spread(8, (adds, 0, 5), (mxs, 5, 8)) if mxs else spread(8, (adds, 0, 8))
    interleave(a, ms, [rd[g] + val[g] for g in range(8)])
    if do_qk:
        rid = rare_id[0]; rare_id[0] += 1
        a(f"v_cmp_lt_f32 vcc, s{S_THR}, v{MX}")
        a(f"s_cbranch_vccnz L_rare{rid}")
        a.label(f"L_back{rid}")
        rare_blocks.append((rid, nxt))

def rare(a, rid, sb):
    a.label(f"L_rare{rid}")
    a(f"v_mov_b32 v{T1}, v{MX}")
    a("s_nop 1")
    a(f"v_permlane32_swap_b32 v{T1}, v{MX}")
    a("s_nop 1")
    a(f"v_max3_f32 v{MX}, v{MX}, v{T1}, 0")
    a(f"v_exp_f32 v{T2}, -v{MX}")
    a(f"v_sub_f32 v{NEGM}, v{NEGM}, v{MX}")
    for i in range(16): a(f"v_sub_f32 v{sb+i}, v{sb+i}, v{MX}")
    for i in range(1, 16): a(f"v_mov_b32 v{NEGM+i}, v{NEGM}")
    a(f"v_mul_f32 v{LSUM}, v{LSUM}, v{T2}")
    for i in range(64): a(f"v_mul_f32 v{OACC+i}, v{OACC+i}, v{T2}")
    a(f"s_branch L_back{rid}")

def attn_setup(a):
    a(f"v_lshrrev_b32 v{T1}, 4, v{LANE}")
    a(f"v_and_b32 v{T2}, 15, v{LANE}")
    a(f"v_lshlrev_b32 v{T3}, 2, v{T1}")
    a(f"v_xor_b32 v{T3}, v{T3}, v{T2}")
    a(f"v_lshlrev_b32 v{T3}, 4, v{T3}")
    a(f"v_lshl_add_u32 v{VOV}, v{T1}, 8, v{T3}")
    a(f"v_lshl_add_u32 v{VOW}, v{T1}, 13, v{T3}")
    a(f"s_lshl_b32 s{S_T0}, s{S_WV}, 16")
    a(f"v_add_u32 v{VOW}, s{S_T0}, v{VOW}")
    a(f"v_lshrrev_b32 v{T3}, 3, v{LANE}")
    a(f"v_and_b32 v{MX}, 7, v{LANE}")
    a(f"v_xor_b32 v{MX}, v{MX}, v{T1}")
    a(f"v_lshlrev_b32 v{VOX}, 10, v{T3}")
    a(f"v_lshl_add_u32 v{VOX}, v{MX}, 4, v{VOX}")
    a(f"s_lshl_b32 s{S_T0}, s{S_WV}, 15")
    a(f"v_add_u32 v{VOX}, s{S_T0}, v{VOX}")
    a(f"v_xor_b32 v{VOX1}, 64, v{VOX}")

def attn_setup2(a):
    a(f"s_and_b32 s{S_T0}, s{S_WV}, 1"); a(f"s_lshl_b32 s{S_T0}, s{S_T0}, 3")
    a(f"v_add_u32 v{T3}, s{S_T0}, v{T1}")
    a(f"v_xor_b32 v{VOK0}, v{T3}, v{T2}")
    a(f"v_xor_b32 v{VOK1}, 4, v{VOK0}")
    a(f"v_lshlrev_b32 v{VOK0}, 4, v{VOK0}"); a(f"v_lshlrev_b32 v{VOK1}, 4, v{VOK1}")
    a(f"v_lshl_add_u32 v{VOK0}, v{T1}, 8, v{VOK0}"); a(f"v_lshl_add_u32 v{VOK1}, v{T1}, 8, v{VOK1}")
    a(f"v_and_b32 v{T3}, 31, v{LANE}")
    a(f"v_lshrrev_b32 v{MX}, 5, v{LANE}")
    a(f"v_bfe_u32 v{XRA}, v{LANE}, 1, 3")
    a(f"v_xor_b32 v{XRA}, v{XRA}, v{MX}")
    a(f"v_lshlrev_b32 v{XRA}, 4, v{XRA}")
    a(f"v_lshl_add_u32 v{XRA}, v{T3}, 7, v{XRA}")
    a(f"v_add_u32 v{XRA}, s{S_XB}, v{XRA}")
    for s in range(1, 4): a(f"v_xor_b32 v{XRA+s}, {s<<5}, v{XRA}")
    a(f"v_xor_b32 v{KA}, v{MX}, v{T2}")
    a(f"v_lshlrev_b32 v{KA}, 4, v{KA}")
    a(f"v_lshl_add_u32 v{KA}, v{T3}, 8, v{KA}")
    for s in range(1, 8): a(f"v_xor_b32 v{KA+s}, {s<<5}, v{KA}")
    a(f"v_lshrrev_b32 v{T2}, 2, v{T2}")
    a(f"v_and_b32 v{T1}, 1, v{T1}")
    a(f"v_lshlrev_b32 v{T1}, 5, v{T1}")
    a(f"v_lshl_add_u32 v{T1}, v{T2}, 8, v{T1}")
    a(f"v_lshl_add_u32 v{T1}, v{T2}, 6, v{T1}")
    a(f"v_and_b32 v{T3}, 3, v{LANE}")
    a(f"v_lshl_add_u32 v{VA}, v{T3}, 3, v{T1}")
    a(f"v_lshl_add_u32 v{VA}, v{MX}, 10, v{VA}")
    a(f"v_and_b32 v{T2}, 1, v{T3}"); a(f"v_lshlrev_b32 v{T2}, 4, v{T2}")
    a(f"v_lshrrev_b32 v{T3}, 1, v{T3}"); a(f"v_lshl_add_u32 v{T2}, v{T3}, 3, v{T2}")
    a(f"v_add_u32 v{WA}, v{T2}, v{T1}")
    a(f"v_lshl_add_u32 v{WA}, v{MX}, 11, v{WA}")
    for db in range(1, 4):
        a(f"v_xor_b32 v{VA+db}, {db<<6}, v{VA}"); a(f"v_xor_b32 v{WA+db}, {db<<6}, v{WA}")
    a(f"v_lshlrev_b32 v{VOST}, 4, v{LANE}")

def qproj(a):
    fl = " nt" if cfg.nt_xw else ""
    wslot = lambda v: 2 * (((v >> 1) + 1) % 3) + (v & 1)
    def kc(u, dst, sh):
        a(f"s_add_u32 s{dst}, s{S_ROT}, {u}"); a(f"s_and_b32 s{dst}, s{dst}, 7"); a(f"s_lshl_b32 s{dst}, s{dst}, {sh}")
    def wissue(u):
        def w(i):
            half, k = i >> 1, i & 1
            if i == 0: kc(u, S_T2, 19)
            a(f"s_add_u32 m0, s{S_W2K}, {wslot(2*u+half)*8192 + k*1024}")
            a(f"s_add_u32 s{S_T0}, s{S_T2}, {(half*32 + k*4)*8192}")
            a.vmem(f"buffer_load_dwordx4 v{VOW}, {sr(S_W,4)}, s{S_T0} offen{fl} lds", ("w", u))
        return [lambda i=i: w(i) for i in range(4)]
    def xissue(u):
        def x(i):
            if i == 0: kc(u, S_T3, 7)
            a(f"s_add_u32 m0, s{S_XB}, {XBUF[u&1] - XBUF[0] + i*1024}")
            a(f"s_add_u32 s{S_T0}, s{S_T3}, {i*8192}")
            a.vmem(f"buffer_load_dwordx4 v{VOX1 if i & 1 else VOX}, {sr(S_X,4)}, s{S_T0} offen{fl} lds", ("x", u))
        return [lambda i=i: x(i) for i in range(4)]
    def xreads(u):
        base = XF[u & 1]
        return [lambda s=s: a.ds(f"ds_read_b128 {vr(base+4*s,4)}, v{XRA+s} offset:{XBUF[u&1]-XBUF[0]}", rng(base+4*s, 4)) for s in range(4)]
    AB = [VF, KF]
    def wreads(v):
        ops = []
        for sp in range(2):
            for db in range(4):
                for p in range(2):
                    r = AB[v & 1] + 4*(4*sp+db) + 2*p
                    ops.append(lambda r=r, sp=sp, db=db, p=p: a.ds(f"ds_read_b64_tr_b16 {vr(r,2)}, v{WA+db} offset:{wslot(v)*8192 + (16*sp+4*p)*256}", rng(r, 2)))
        return ops
    def wm(v):
        u = v >> 1
        ms = []
        for sp in range(2):
            for db in range(4):
                def m(sp=sp, db=db):
                    f = AB[v & 1] + 4*(4*sp+db)
                    xf = XF[u & 1] + 4*(2*(v & 1) + sp)
                    need = list(rng(f, 4)) + list(rng(xf, 4))
                    if (v & 1) == 0 and sp == 0 and db == 0: need += list(rng(XF[u & 1], 16))
                    a.need(need)
                    c = "0" if (v == 0 and sp == 0) else vr(OACC+16*db, 16)
                    a(f"{MFMA} {vr(OACC+16*db,16)}, {vr(f,4)}, {vr(xf,4)}, {c}")
                ms.append(m)
        return ms
    for u in range(2):
        for o in xissue(u) + wissue(u): o()
    attn_setup2(a)
    stamp(a, 1)
    a.vm_wait([("w", 0), ("x", 0)]); a("s_barrier")
    stamp(a, 2)
    for o in xreads(0): o()
    for o in wreads(0): o()
    for o in wissue(2): o()
    for u in range(8):
        a.c(f"qproj step {u}")
        if u in (2, 6): stamp(a, {2: 3, 6: 4}[u])
        xs = xissue(u + 2) if u + 2 < 8 else []
        interleave(a, wm(2*u), spread(8, (wreads(2*u+1), 0, 6), (xs, 0, 8)) if xs else spread(8, (wreads(2*u+1), 0, 6)))
        if u < 7: a.vm_wait([("w", u+1), ("x", u+1)], also_lgkm0=True)
        else: a.lgkm0()
        a("s_barrier")
        if u + 3 < 8: dm = wissue(u + 3)
        else: dm = dma_kv(a, 2*(u+3)) + dma_kv(a, 2*(u+3)+1)
        if u < 7: fill = spread(8, (xreads(u+1), 0, 1), (wreads(2*u+2), 1, 7), (dm, 0, 8))
        else: fill = spread(8, (dm, 0, 8))
        interleave(a, wm(2*u+1), fill)

def attention(a):
    A = cfg.ahead
    a.vm_wait([16, 17]); a("s_barrier")
    for s in range(8): kread(a, 16 % 8, s)()
    for n in range(22, 18 + A):
        for o in dma_kv(a, n): o()
    a("s_nop 7")
    for db in range(4):
        for i in range(16): a(f"v_mul_f32 v{OACC+16*db+i}, s{S_SC}, v{OACC+16*db+i}")
        for i in range(8): a(f"v_cvt_pk_bf16_f32 v{QF+8*db+i}, v{OACC+16*db+2*i}, v{OACC+16*db+2*i+1}")
    a("s_nop 1")
    ms = qk_mfmas(a, SB[0], "0")
    zs = [lambda i=i: a(f"v_mov_b32 v{OACC+i}, 0") for i in range(64)]
    interleave(a, ms, spread(8, (zs, 0, 8)))
    a(f"v_mov_b32 v{LSUM}, 0")
    for s in range(8): kread(a, 17 % 8, s)()
    for m in max16(a, SB[0]): m()
    a(f"v_mov_b32 v{T1}, v{MX}")
    a("s_nop 1")
    a(f"v_permlane32_swap_b32 v{T1}, v{MX}")
    a("s_nop 1")
    a(f"v_max_f32 v{MX}, v{MX}, v{T1}")
    for i in range(16): a(f"v_sub_f32 v{SB[0]+i}, v{SB[0]+i}, v{MX}")
    for i in range(16): a(f"v_sub_f32 v{NEGM+i}, 0, v{MX}")
    stamp(a, 5); cstamp(a, 11)
    a(f"s_mov_b32 s{S_CNT}, 7")
    a.raw(".p2align 3")
    a.label("L_loop")
    for j in range(4): body(a, j, [18 + 2*j + A, 19 + 2*j + A], 2*(A-2))
    a(f"s_sub_u32 s{S_CNT}, s{S_CNT}, 1"); a(f"s_cmp_lg_u32 s{S_CNT}, 0"); a("s_cbranch_scc1 L_loop")
    issued = 17 + 56 + A
    for j in range(28, 32):
        need = 19 + 2*j if j < 30 else 18 + 2*j
        vmw = 2 * (issued - need)
        ns = [n for n in (18 + 2*j + A, 19 + 2*j + A) if n <= 80]
        body(a, j % 4, ns, vmw, do_qk=(j < 31), do_kread=(j < 30))
        if ns: issued = ns[-1]

S_F = S_X
S_D = S_W
def build_flag_srds(a, f, d):
    a(f"s_add_u32 s{f}, s28, {WS_F}"); a(f"s_addc_u32 s{f+1}, s29, 0"); a(f"s_mov_b32 s{f+2}, {F_BYTES}"); a(f"s_mov_b32 s{f+3}, 0x20000")
    a(f"s_mov_b32 s{d}, s26"); a(f"s_mov_b32 s{d+1}, s27"); a(f"s_mov_b32 s{d+2}, 256"); a(f"s_mov_b32 s{d+3}, 0x20000")

def claim_nonce(a, f, d, tag):
    a(f"v_mov_b32 v{MX}, 0")
    a(f"s_mov_b32 s{S_T0}, {EP_OFF}")
    a(f"buffer_load_dword v{T2}, v{MX}, {sr(f,4)}, s{S_T0} offen sc1")
    a("s_waitcnt vmcnt(0)")
    a(f"v_readfirstlane_b32 s{S_N0}, v{T2}")
    a("s_nop 0")
    a(f"s_add_u32 s{S_N0}, s{S_N0}, 1")
    a(f"s_max_u32 s{S_N0}, s{S_N0}, 1")
    a(f"v_mov_b32 v{T2}, s{S_N0}"); a(f"v_mov_b32 v{T3}, 0"); a(f"v_mov_b32 v{T1}, s{S_N0}")
    a("s_mov_b64 exec, 1")
    a(f"buffer_atomic_cmpswap {vr(T2,2)}, v{MX}, {sr(d,4)}, 0 offen sc0 sc1")
    a("s_waitcnt vmcnt(0)")
    a(f"v_readfirstlane_b32 s{S_T1}, v{T2}")
    a("s_nop 0")
    a(f"s_cmp_eq_u32 s{S_T1}, 0")
    a(f"s_cbranch_scc0 L_lost{tag}")
    a(f"buffer_store_dword v{T1}, v{MX}, {sr(f,4)}, s{S_T0} offen sc1")
    a(f"s_branch L_got{tag}")
    a.label(f"L_lost{tag}")
    a(f"s_mov_b32 s{S_N0}, s{S_T1}")
    a.label(f"L_got{tag}")
    a("s_mov_b64 exec, -1")

def o_epilogue(a):
    build_flag_srds(a, S_F, S_D)
    a(f"v_mov_b32 v{MX}, 0")
    a(f"v_mov_b32 v{T1}, v{LSUM}")
    a(f"buffer_load_dword v{T3}, v{MX}, {sr(S_D,4)}, 0 offen sc1")
    a("s_nop 0")
    a(f"v_permlane32_swap_b32 v{T1}, v{LSUM}")
    a("s_nop 1")
    a(f"v_add_f32 v{LSUM}, v{LSUM}, v{T1}")
    a(f"v_rcp_f32 v{T2}, v{LSUM}")
    a(f"s_movk_i32 s{S_T0}, 4096")
    a("s_nop 0")
    for db in range(4):
        for i in range(16): a(f"v_mul_f32 v{OACC+16*db+i}, v{OACC+16*db+i}, v{T2}")
        for i in range(8): a(f"v_cvt_pk_bf16_f32 v{QF+8*db+i}, v{OACC+16*db+2*i}, v{OACC+16*db+2*i+1}")
        for sp in range(2):
            ks = 2*db + sp
            so = "0" if ks < 4 else f"s{S_T0}"
            a(f"buffer_store_dwordx4 {vr(QF+4*ks,4)}, v{VOST}, {sr(S_O,4)}, {so} offen offset:{(ks%4)*1024} sc1")
    a(f"s_lshl_b32 s{S_T2}, s{S_BR}, 3"); a(f"s_add_u32 s{S_T2}, s{S_T2}, s{S_B}"); a(f"s_lshl_b32 s{S_T2}, s{S_T2}, 2")
    a(f"s_add_u32 s{S_T3}, s{S_T2}, s{S_XQ}"); a(f"s_lshl_b32 s{S_T3}, s{S_T3}, 8")
    a(f"s_lshl_b32 s{S_T1}, s{S_WV}, 5"); a(f"s_add_u32 s{S_T3}, s{S_T3}, s{S_T1}")
    a(f"s_lshl_b32 s{S_T0}, s{S_RND}, 7"); a(f"s_add_u32 s{S_OFFK}, s{S_T3}, s{S_T0}")
    a(f"s_lshl_b32 s{S_T0}, s{S_NB}, 3"); a(f"s_add_u32 s{S_OFFK}, s{S_OFFK}, s{S_T0}")
    a("s_waitcnt vmcnt(0)")
    a(f"v_readfirstlane_b32 s{S_N0}, v{T3}")
    a("s_nop 0")
    a(f"s_cmp_lg_u32 s{S_N0}, 0")
    a("s_cbranch_scc1 L_havenonce")
    claim_nonce(a, S_F, S_D, "b")
    a.label("L_havenonce")
    a(f"s_xor_b32 s{S_N1}, s{S_N0}, {TAGX}")
    a(f"v_mov_b32 v{T2}, s{S_N0}"); a(f"v_mov_b32 v{T3}, s{S_N1}")
    a("s_mov_b64 exec, 1")
    a(f"buffer_store_dwordx2 {vr(T2,2)}, v{MX}, {sr(S_F,4)}, s{S_OFFK} offen sc1")
    a("s_mov_b64 exec, -1")

def poll(a, tag, soff, vaddr):
    a(f"s_mov_b32 s{S_T1}, 0x200000")
    a.label(f"L_poll{tag}")
    a(f"buffer_load_dwordx2 {vr(T2,2)}, v{vaddr}, {sr(S_F,4)}, s{soff} offen sc1")
    a("s_waitcnt vmcnt(0)")
    a(f"v_cmp_ne_u32 vcc, s{S_N0}, v{T2}")
    a(f"v_cmp_ne_u32 s[4:5], s{S_N1}, v{T3}")
    a("s_or_b64 vcc, vcc, s[4:5]")
    a(f"s_cbranch_scc0 L_polld{tag}")
    a("s_sleep 2")
    a(f"s_sub_u32 s{S_T1}, s{S_T1}, 1")
    a(f"s_cmp_lg_u32 s{S_T1}, 0")
    a(f"s_cbranch_scc1 L_poll{tag}")
    a("s_branch L_end")
    a.label(f"L_polld{tag}")

def oproj(a):
    S_WO = S_W; S_OO = S_K; S_P = S_V; S_OUT = S_O
    VPOLL = KA; VOUT = KA + 1
    S_HB = S_OFFV
    S_RC = S_ROT
    S_PH = S_CNT
    a("s_setprio 0")
    a(f"s_lshl_b32 s{S_T0}, s{S_NB}, 8"); srd(a, S_WO, 12, S_T0, 0); a(f"s_sub_u32 s{S_WO+2}, {4096*1024}, s{S_T0}")
    a(f"s_add_u32 s{S_T0}, s{S_T2}, s{S_WV}"); a(f"s_lshl_b32 s{S_T0}, s{S_T0}, 18"); srd(a, S_OO, 28, S_T0, 32*8192)
    a(f"s_add_u32 s{S_RC}, s{S_NB}, s{S_B}")
    a(f"v_lshrrev_b32 v{T1}, 4, v{LANE}")
    a(f"v_mul_u32_u24 v{T1}, 768, v{T1}")
    a(f"v_add_u32 v{VOW}, v{VOV}, v{T1}")
    a(f"s_lshl_b32 s{S_T0}, s{S_WV}, 13")
    a(f"v_add_u32 v{VOW}, s{S_T0}, v{VOW}")
    a(f"s_lshl_b32 s{S_T0}, s{S_XQ}, 6")
    for d in range(4): a(f"v_xor_b32 v{VA+d}, s{S_T0}, v{VA+d}")
    a(f"v_and_b32 v{VPOLL}, 3, v{LANE}"); a(f"v_lshlrev_b32 v{VPOLL}, 3, v{VPOLL}")
    a(f"s_lshl_b32 s{S_HB}, s{S_XQ}, 2")
    def headoff(i, dst, hb, sh):
        a(f"s_add_u32 s{dst}, s{S_RC}, {i}"); a(f"s_and_b32 s{dst}, s{dst}, 3"); a(f"s_add_u32 s{dst}, s{dst}, s{hb}"); a(f"s_lshl_b32 s{dst}, s{dst}, {sh}")
    def wissue(s):
        def w(i):
            half, k = i >> 1, i & 1
            if i == 0: headoff((s % 8) >> 1, S_SC, S_HB, 17)
            a(f"s_add_u32 m0, s{S_W2K}, {(2*(s%4)+half)*8192 + k*1024}")
            a(f"s_add_u32 s{S_T0}, s{S_SC}, {(64*(s&1) + half*32 + k*4)*1024}")
            a.vmem(f"buffer_load_dwordx4 v{VOW}, {sr(S_WO,4)}, s{S_T0} offen lds", ("w", s))
        return [lambda i=i: w(i) for i in range(4)]
    def oissue(i, buf):
        def o(k):
            if k == 0: headoff(i, S_THR, S_OFFK, 13)
            if k == 4: a(f"s_add_u32 s{S_THR}, s{S_THR}, 4096")
            a.vmem(f"buffer_load_dwordx4 {vr(OB[buf]+4*k,4)}, v{VOST}, {sr(S_OO,4)}, s{S_THR} offen offset:{(k%4)*1024} sc1", ("o", i))
        return [lambda k=k: o(k) for k in range(8)]
    AB = [VF, KF]
    def wreads(v):
        return [vread(a, v % 8, sp, db, p, AB[v & 1]) for sp in range(2) for db in range(4) for p in range(2)]
    a("s_barrier")
    for s in range(4):
        for o in wissue(s): o()
    for i in range(64): a(f"v_mov_b32 v{OACC+i}, 0")
    a(f"s_mov_b32 s{S_OFFK}, s{S_HB}")
    a(f"s_mov_b32 s{S_PH}, 0")
    a("s_waitcnt vmcnt(0)"); a("s_barrier"); a.vm = []
    for o in wreads(0): o()
    a.label("L_phase")
    stamp(a, 7)
    poll(a, "o", S_T3, VPOLL)
    stamp(a, 8)
    a.vm = []
    obuf = [0, 1, 2, 0]
    for i in range(3):
        for o in oissue(i, i): o()
    for s in range(8):
        i = s >> 1
        ob = OB[obuf[i]] + 16*(s & 1)
        if (s & 1) == 0: a.vm_wait([("o", i)])
        extra = oissue(3, 0) if s == 2 else []
        f1 = spread(8, (wreads(2*s+1), 0, 6), (extra, 0, 8)) if extra else spread(8, (wreads(2*s+1), 0, 6))
        interleave(a, pv_mfmas(a, AB[0], ob), f1)
        a.vm_wait([("w", s+1)], also_lgkm0=True)
        a("s_barrier")
        if s == 4: a(f"s_add_u32 s{S_HB}, s{S_HB}, 16")
        interleave(a, pv_mfmas(a, AB[1], ob + 8), spread(8, (wreads(2*s+2), 0, 6), (wissue(s+4), 0, 8)))
    a(f"s_add_u32 s{S_OFFK}, s{S_OFFK}, 16"); a(f"s_add_u32 s{S_T3}, s{S_T3}, 128")
    a(f"s_add_u32 s{S_PH}, s{S_PH}, 1"); a(f"s_cmp_lt_u32 s{S_PH}, 2"); a("s_cbranch_scc1 L_phase")
    stamp(a, 9)
    a(f"s_add_u32 s{S_T2}, s{S_T2}, s{S_NB}")
    a(f"s_lshl_b32 s{S_T0}, s{S_T2}, 17"); a(f"s_add_u32 s{S_T0}, s{S_T0}, {WS_P}"); srd(a, S_P, 28, S_T0, 131072)
    a(f"s_lshl_b32 s{S_SC}, s{S_XQ}, 13"); a(f"s_add_u32 s{S_SC}, s{S_SC}, s{S_W2K}")
    PK = 120
    a("s_nop 1")
    for d in range(1, 4):
        for i in range(8): a(f"v_cvt_pk_bf16_f32 v{PK+8*d+i}, v{OACC+16*d+2*i}, v{OACC+16*d+2*i+1}")
        a(f"s_xor_b32 s{S_T0}, s{S_XQ}, {d}"); a(f"s_lshl_b32 s{S_T0}, s{S_T0}, 15"); a(f"s_add_u32 s{S_T0}, s{S_T0}, s{S_SC}")
        for k in range(2): a(f"buffer_store_dwordx4 {vr(PK+8*d+4*k,4)}, v{VOST}, {sr(S_P,4)}, s{S_T0} offen offset:{k*1024} sc1")
    a(f"s_lshl_b32 s{S_T3}, s{S_T2}, 7"); a(f"s_lshl_b32 s{S_T0}, s{S_WV}, 5"); a(f"s_add_u32 s{S_T3}, s{S_T3}, s{S_T0}"); a(f"s_add_u32 s{S_T3}, s{S_T3}, {FP_OFF}")
    a(f"s_lshl_b32 s{S_T0}, s{S_XQ}, 3"); a(f"s_add_u32 s{S_T0}, s{S_T0}, s{S_T3}")
    a(f"v_mov_b32 v{T2}, s{S_N0}"); a(f"v_mov_b32 v{T3}, s{S_N1}")
    a(f"s_lshl_b32 s{S_T1}, s{S_B}, 2"); a(f"s_add_u32 s{S_T1}, s{S_T1}, s{S_WV}"); a(f"s_lshl_b32 s{S_T1}, s{S_T1}, 16")
    a(f"s_lshl_b32 s{S_THR}, s{S_BR}, 10"); a(f"s_add_u32 s{S_T1}, s{S_T1}, s{S_THR}")
    a(f"s_lshl_b32 s{S_THR}, s{S_NB}, 8"); a(f"s_add_u32 s{S_T1}, s{S_T1}, s{S_THR}")
    a(f"s_lshl_b32 s{S_THR}, s{S_XQ}, 6"); a(f"s_add_u32 s{S_T1}, s{S_T1}, s{S_THR}")
    srd(a, S_OUT, 24, S_T1, 0); a(f"s_sub_u32 s{S_OUT+2}, {8*128*2048}, s{S_T1}")
    a(f"v_and_b32 v{T1}, 31, v{LANE}"); a(f"v_lshlrev_b32 v{VOUT}, 11, v{T1}")
    a(f"v_lshrrev_b32 v{T1}, 5, v{LANE}"); a(f"v_lshl_add_u32 v{VOUT}, v{T1}, 4, v{VOUT}")
    a("s_waitcnt vmcnt(0)")
    a("s_mov_b64 exec, 1")
    a(f"buffer_store_dwordx2 {vr(T2,2)}, v{MX}, {sr(S_F,4)}, s{S_T0} offen sc1")
    a("s_mov_b64 exec, -1")
    poll(a, "p", S_T3, VPOLL)
    stamp(a, 6)
    a(f"s_lshl_b32 s{S_SC}, s{S_XQ}, 15"); a(f"s_add_u32 s{S_SC}, s{S_SC}, s{S_W2K}")
    for d in range(1, 4):
        a(f"s_xor_b32 s{S_T0}, s{S_XQ}, {d}"); a(f"s_lshl_b32 s{S_T0}, s{S_T0}, 13"); a(f"s_add_u32 s{S_T0}, s{S_T0}, s{S_SC}")
        for k in range(2): a(f"buffer_load_dwordx4 {vr(PK+8*d+4*k,4)}, v{VOST}, {sr(S_P,4)}, s{S_T0} offen offset:{k*1024} sc1")
    for d in range(1, 4):
        a(f"s_waitcnt vmcnt({2*(3-d)})")
        for i in range(8):
            a(f"v_lshlrev_b32 v{T1}, 16, v{PK+8*d+i}")
            a(f"v_and_b32 v{T2}, 0xffff0000, v{PK+8*d+i}")
            a(f"v_add_f32 v{OACC+2*i}, v{OACC+2*i}, v{T1}")
            a(f"v_add_f32 v{OACC+2*i+1}, v{OACC+2*i+1}, v{T2}")
    for i in range(8): a(f"v_cvt_pk_bf16_f32 v{PK+i}, v{OACC+2*i}, v{OACC+2*i+1}")
    a("s_nop 1")
    a(f"v_permlane32_swap_b32 v{PK}, v{PK+2}"); a(f"v_permlane32_swap_b32 v{PK+1}, v{PK+3}")
    a(f"v_permlane32_swap_b32 v{PK+4}, v{PK+6}"); a(f"v_permlane32_swap_b32 v{PK+5}, v{PK+7}")
    a("s_nop 1")
    a(f"buffer_store_dwordx4 {vr(PK,4)}, v{VOUT}, {sr(S_OUT,4)}, 0 offen")
    a(f"buffer_store_dwordx4 {vr(PK+4,4)}, v{VOUT}, {sr(S_OUT,4)}, 0 offen offset:32")

def gen_kernel(a):
    name = KN + "_kernel"
    a.raw(".p2align 8"); a.raw(f".type {name},@function"); a.label(name)
    a("s_cmp_ge_u32 s2, 512"); a("s_cbranch_scc1 L_end")
    a("s_load_dwordx16 s[4:19], s[0:1], 0")
    a("s_load_dwordx4 s[20:23], s[0:1], 64")
    a("s_load_dwordx4 s[24:27], s[0:1], 80")
    a("s_load_dwordx2 s[28:29], s[0:1], 96")
    a(f"v_lshrrev_b32 v{T1}, 6, v0")
    a(f"v_and_b32 v{LANE}, 63, v0")
    a(f"v_readfirstlane_b32 s{S_WV}, v{T1}")
    a(f"s_bfe_u32 s{S_BR}, s2, 0x10002")
    a(f"s_and_b32 s{S_XQ}, s2, 3")
    a(f"s_bfe_u32 s{S_NB}, s2, 0x20003")
    a(f"s_bfe_u32 s{S_B}, s2, 0x30005")
    a(f"s_lshr_b32 s{S_RND}, s2, 8")
    a(f"s_lshl_b32 s{S_H}, s{S_XQ}, 2"); a(f"s_add_u32 s{S_H}, s{S_H}, s{S_NB}")
    a(f"s_lshl_b32 s{S_T0}, s{S_RND}, 4"); a(f"s_add_u32 s{S_H}, s{S_H}, s{S_T0}")
    if cfg.rot:
        a(f"s_lshl_b32 s{S_ROT}, s{S_NB}, 1"); a(f"s_add_u32 s{S_ROT}, s{S_ROT}, s{S_B}")
    else:
        a(f"s_mov_b32 s{S_ROT}, 0")
    a("s_setprio 1")
    a(f"s_cmp_eq_u32 s{S_RND}, 0"); a("s_cbranch_scc0 L_noprio"); a("s_setprio 2"); a.label("L_noprio")
    a(f"s_lshl_b32 s{S_W2K}, s{S_WV}, 11")
    a(f"s_lshl_b32 s{S_XB}, s{S_WV}, 12"); a(f"s_add_u32 s{S_XB}, s{S_XB}, {XBUF[0]}")
    attn_setup(a)
    a("s_waitcnt lgkmcnt(0)")
    zero_stamps(a); stamp(a, 0); cstamp(a, 10)
    a(f"s_cmp_eq_u32 s{S_BR}, 0")
    for i in range(5): a(f"s_cselect_b64 {sr(4+2*i,2)}, {sr(4+2*i,2)}, {sr(14+2*i,2)}")
    a(f"s_lshl_b32 s{S_T0}, s2, 2"); a(f"s_add_u32 s{S_T0}, s{S_T0}, s{S_WV}"); a(f"s_cmp_eq_u32 s{S_T0}, {4*256}")
    a("s_cbranch_scc0 L_noclaim")
    build_flag_srds(a, S_K, S_V)
    a(f"v_mov_b32 v{KA+2}, v{T1}"); a(f"v_mov_b32 v{KA+3}, v{T2}")
    claim_nonce(a, S_K, S_V, "a")
    a(f"v_mov_b32 v{T1}, v{KA+2}"); a(f"v_mov_b32 v{T2}, v{KA+3}")
    a("s_waitcnt vmcnt(0)")
    a.label("L_noclaim")
    a(f"s_lshl_b32 s{S_T0}, s{S_B}, 17"); srd(a, S_X, 4, S_T0, 131072)
    a(f"s_lshl_b32 s{S_T0}, s{S_H}, 8"); srd(a, S_W, 10, S_T0, 0)
    a(f"s_sub_u32 s{S_W+2}, {512*8192}, s{S_T0}")
    a(f"s_lshl_b32 s{S_T0}, s{S_B}, 5"); a(f"s_add_u32 s{S_T0}, s{S_T0}, s{S_H}"); a(f"s_lshl_b32 s{S_T0}, s{S_T0}, 18")
    srd(a, S_K, 6, S_T0, 262144); srd(a, S_V, 8, S_T0, 262144)
    a(f"s_lshl_b32 s{S_T0}, s{S_BR}, 3"); a(f"s_add_u32 s{S_T0}, s{S_T0}, s{S_B}"); a(f"s_lshl_b32 s{S_T0}, s{S_T0}, 2")
    a(f"s_add_u32 s{S_T0}, s{S_T0}, s{S_WV}"); a(f"s_lshl_b32 s{S_T0}, s{S_T0}, 5"); a(f"s_add_u32 s{S_T0}, s{S_T0}, s{S_H}")
    a(f"s_lshl_b32 s{S_T0}, s{S_T0}, 13")
    srd(a, S_O, 28, S_T0, 8192)
    a(f"s_mov_b32 s{S_OFFK}, s{S_W2K}"); a(f"s_mov_b32 s{S_OFFV}, s{S_W2K}")
    a(f"s_mov_b32 s{S_THR}, 0x41000000")
    sc = math.log2(math.e) / math.sqrt(128.0)
    a(f"s_mov_b32 s{S_SC}, 0x{struct.unpack('<I', struct.pack('<f', sc))[0]:08x}")
    qproj(a)
    attention(a)
    stamp(a, 6)
    o_epilogue(a)
    a(f"s_cmp_lg_u32 s{S_RND}, 0"); a("s_cbranch_scc1 L_fin")
    stamp(a, 4)
    oproj(a)
    a.label("L_fin")
    dump_stamps(a, LANE, S_WV, S_T0, 0x2000000)
    a.label("L_end")
    a("s_endpgm")
    for rid, sb in rare_blocks: rare(a, rid, sb)

def gen(**kw):
    for k, v in kw.items(): setattr(cfg, k, v)
    rare_id[0] = 0; rare_blocks.clear()
    a = Asm()
    name = KN + "_kernel"
    a.raw("; @launch grid=(512,1,1) block=(256,1,1) lds=81920")
    a.raw('.amdgcn_target "amdgcn-amd-amdhsa--gfx950"'); a.raw(".text")
    a.raw(f".globl {name}")
    gen_kernel(a)
    a.raw('.section .rodata,"a"'); a.raw(".p2align 6")
    a.raw(f".amdhsa_kernel {name}")
    for d in ["next_free_vgpr 256", "next_free_sgpr 102", "accum_offset 256", "group_segment_fixed_size 0", "kernarg_size 104",
              "user_sgpr_count 2", "user_sgpr_kernarg_segment_ptr 1", "system_sgpr_workgroup_id_x 1"]:
        a.raw("  .amdhsa_" + d)
    a.raw(".end_amdhsa_kernel")
    return a.text()

if __name__ == "__main__":
    open(f"cdna_kernels/{KN}.s", "w").write(gen())
    open("k3_a5.s", "w").write(gen(stamp=True, ahead=5))
    open("k3_a4.s", "w").write(gen(stamp=True, ahead=4))
    open("k3_a6.s", "w").write(gen(stamp=True, ahead=6))
```

```python
import sys, math, struct
sys.path.insert(0, "gen")
from emit import *
KN = "concat_heads__mha_block_cached__gqa_block_cached__near_ridge"

class Cfg:
    nt_kv = True
    stamp = False
    ahead = 5
    rot = True
    slp = 2
    x_noq2 = False
    x_nopv = False
    x_noph1 = False
    t_poll = 40
cfg = Cfg()

MFMA = "v_mfma_f32_32x32x16_bf16"
KA = 0; VA = 8
VOK0, VOK1, VOV = 12, 13, 14
LSUM = 15; MX = 16; T1 = 17; T2 = 18; T3 = 19
XRA = 15
VOX1 = 19
LANE = 20; VOW = 21; VOX = 22; VOST = 23
VF = 24; OACC = 56; QF = 120; KF = 152
SB = [184, 200]; NEGM = 216; PB = 232
XF = [184, 200]
XR = 120
WA = 248
VFL = 252; VZ = 254; VTR = 255
VNON = 22
OB = [120, 184, 216]
VB1 = 0; VB2 = 4
S_K, S_V, S_X, S_W, S_O = 32, 36, 40, 44, 48
S_WV, S_BR, S_H, S_B, S_W2K, S_OFFK, S_OFFV, S_CNT, S_T0, S_THR, S_SC, S_T1 = 52, 53, 54, 55, 56, 57, 58, 59, 60, 61, 62, 63
S_ROT, S_T2, S_T3 = 30, 31, 3
S_GRP, S_XQ, S_NB = 96, 97, 98
S_N0, S_N1 = 99, 100
S_XB = 101
S_F = 16
S_FOFF = 20; S_TRI = 22; S_GID = 21; S_CL = 14; S_WB = 15; S_POFF = 23
S_D = S_X
WS_P = 0x1000000
WS_F = 0x1800000
FO_BYTES = 64 * 256
FP_OFF = FO_BYTES
EP_OFF = FP_OFF + 64 * 128
F_BYTES = EP_OFF + 128
TAGX = 0x5bd1e995
WB = 65536
XB = WB + 49152

NST = 14
def stamp(a, k):
    if cfg.stamp: a(f"s_memrealtime {sr(64+2*k,2)}")
def cstamp(a, k):
    if cfg.stamp: a(f"s_memtime {sr(64+2*k,2)}")
def trace(a):
    if cfg.stamp:
        a(f"s_mov_b32 m0, s{S_TRI}"); a("s_nop 0"); a(f"v_writelane_b32 v{VTR}, s92, m0"); a(f"s_add_u32 s{S_TRI}, s{S_TRI}, 1"); a("s_memrealtime s[92:93]")
def dump_stamps(a):
    if not cfg.stamp: return
    t0 = S_T0
    a("s_waitcnt vmcnt(0) lgkmcnt(0)")
    a(f"s_mov_b32 m0, s{S_TRI}"); a("s_nop 0"); a(f"v_writelane_b32 v{VTR}, s92, m0")
    stamp(a, NST-1); cstamp(a, 12)
    a(f"s_getreg_b32 s92, hwreg(HW_REG_XCC_ID)"); a(f"s_getreg_b32 s93, hwreg(HW_REG_HW_ID)")
    a("s_waitcnt lgkmcnt(0)")
    a(f"s_add_u32 s28, s28, 0x2000000"); a("s_addc_u32 s29, s29, 0"); a("s_mov_b32 s30, 0x100000"); a("s_mov_b32 s31, 0x20000")
    for k in range(NST): a(f"v_mov_b32 v{32+k}, s{64+2*k}")
    a("v_mov_b32 v46, s92"); a("v_mov_b32 v47, s93")
    a(f"s_lshl_b32 s{t0}, s{S_GRP}, 8"); a(f"s_add_u32 s{t0}, s{t0}, s2")
    a(f"s_lshl_b32 s{t0}, s{t0}, 2"); a(f"s_add_u32 s{t0}, s{t0}, s{S_WV}"); a(f"s_lshl_b32 s{t0}, s{t0}, 6"); a(f"v_mov_b32 v30, s{t0}")
    a(f"s_lshl_b32 s{t0}, s{t0}, 2"); a(f"s_add_u32 s{t0}, s{t0}, 0x40000"); a(f"v_lshlrev_b32 v31, 2, v{LANE}")
    a(f"buffer_store_dword v{VTR}, v31, s[28:31], s{t0} offen")
    a(f"v_cmp_eq_u32 vcc, 0, v{LANE}"); a("s_and_saveexec_b64 s[94:95], vcc")
    for k in range(4): a(f"buffer_store_dwordx4 v[{32+4*k}:{35+4*k}], v30, s[28:31], 0 offen offset:{16*k}")
def zero_stamps(a):
    if cfg.stamp:
        a("s_mov_b32 s92, 0"); a(f"v_mov_b32 v{VTR}, 0")
        for k in range(NST): a(f"s_mov_b64 {sr(64+2*k,2)}, 0")

def srd(a, d, plo, off_sgpr, nbytes):
    a(f"s_add_u32 s{d}, s{plo}, s{off_sgpr}")
    a(f"s_addc_u32 s{d+1}, s{plo+1}, 0")
    a(f"s_mov_b32 s{d+2}, {nbytes}")
    a(f"s_mov_b32 s{d+3}, 0x20000")

def interleave(a, mfmas, fillers):
    for i, m in enumerate(mfmas):
        m()
        if i < len(fillers):
            for f in fillers[i]: f()
def spread(nslots, *lists):
    out = [[] for _ in range(nslots)]
    for (lst, lo, hi) in lists:
        n = len(lst)
        for i, x in enumerate(lst):
            out[lo + (i * (hi - lo)) // n].append(x)
    return out
def run(ops):
    for o in ops: o()

def is_k(n): return (n < 18) or (n % 2 == 1)
def kv_index_before(n):
    ks = sum(1 for m in range(16, n) if is_k(m)); return ks, (n - 16) - ks
def dma_kv(a, n):
    slot = n % 8
    fl = " nt" if cfg.nt_kv else ""
    v0, v1, s, so = (VOK0, VOK1, S_K, S_OFFK) if is_k(n) else (VOV, VOV, S_V, S_OFFV)
    return [lambda: (a(f"s_add_u32 m0, s{S_W2K}, {slot*8192}"), a("s_nop 0"),
                     a.vmem(f"buffer_load_dwordx4 v{v0}, {sr(s,4)}, s{so} offen{fl} lds", n)),
            lambda: (a.vmem(f"buffer_load_dwordx4 v{v1}, {sr(s,4)}, s{so} offen offset:1024{fl} lds", n),
                     a(f"s_add_u32 s{so}, s{so}, 8192"))]
def set_kv_pos(a, n):
    k, v = kv_index_before(n)
    a(f"s_add_u32 s{S_OFFK}, s{S_W2K}, {k*8192}"); a(f"s_add_u32 s{S_OFFV}, s{S_W2K}, {v*8192}")

def kread(a, slot, s):
    return lambda: a.ds(f"ds_read_b128 {vr(KF+4*s,4)}, v{KA+s} offset:{slot*8192}", rng(KF+4*s, 4))
def trreads(a, areg, off, base, pstep):
    ops = []
    for sp in range(2):
        for db in range(4):
            for p in range(2):
                r = base + 4*(4*sp+db) + 2*p
                ops.append(lambda r=r, sp=sp, db=db, p=p: a.ds(f"ds_read_b64_tr_b16 {vr(r,2)}, v{areg+db} offset:{off + (16*sp+pstep*p)*256}", rng(r, 2)))
    return ops
def qk_mfmas(a, sbuf, first_c):
    ms = []
    for s in range(8):
        def m(s=s):
            a.need(rng(KF+4*s, 4))
            c = first_c if s == 0 else vr(sbuf, 16)
            a(f"{MFMA} {vr(sbuf,16)}, {vr(KF+4*s,4)}, {vr(QF+4*s,4)}, {c}")
        ms.append(m)
    return ms
def acc_mfmas(a, af, bf, first=False, bneed=False):
    ms = []
    for sp in range(2):
        for db in range(4):
            def m(sp=sp, db=db):
                f = af + 4*(4*sp+db)
                a.need(list(rng(f, 4)) + (list(rng(bf+4*sp, 4)) if bneed else []))
                c = "0" if (first and sp == 0) else vr(OACC+16*db, 16)
                a(f"{MFMA} {vr(OACC+16*db,16)}, {vr(f,4)}, {vr(bf+4*sp,4)}, {c}")
            ms.append(m)
    return ms
def max16(a, sb):
    ops = [lambda: a(f"v_max3_f32 v{MX}, v{sb}, v{sb+1}, v{sb+2}")]
    for i in range(3, 15, 2):
        ops.append(lambda i=i: a(f"v_max3_f32 v{MX}, v{MX}, v{sb+i}, v{sb+i+1}"))
    ops.append(lambda: a(f"v_max_f32 v{MX}, v{MX}, v{sb+15}"))
    return ops

rare_id = [0]
rare_blocks = []
def body(a, j, dmas_n, vmwait, do_qk=True):
    cur = SB[j & 1]; nxt = SB[(j + 1) & 1]
    vslot = (18 + 2*j) % 8; kslot = (19 + 2*j) % 8
    a.c(f"---- body phase {j}")
    a(f"s_waitcnt vmcnt({vmwait}) lgkmcnt(0)"); a.lds = []
    a("s_barrier")
    trace(a)
    vreads = trreads(a, VA, vslot*8192, VF, 8)
    exps = [lambda i=i: a(f"v_exp_f32 v{cur+i}, v{cur+i}") for i in range(16)]
    cvts = [lambda i=i: a(f"v_cvt_pk_bf16_f32 v{PB+i}, v{cur+2*i}, v{cur+2*i+1}") for i in range(8)]
    dmas = []
    for n in dmas_n: dmas += dma_kv(a, n)
    if do_qk:
        ms = qk_mfmas(a, nxt, vr(NEGM, 16))
        val = [[exps[0], exps[1], exps[2]], [exps[3], exps[4], cvts[0]], [exps[5], exps[6], cvts[1]], [exps[7], exps[8], cvts[2]],
               [exps[9], exps[10], cvts[3]], [exps[11], exps[12], cvts[4]], [exps[13], exps[14], cvts[5]], [exps[15], cvts[6]]]
        rd = spread(8, (vreads, 0, 6))
        dm = spread(8, (dmas, 0, 4))
        interleave(a, ms, [dm[g] + rd[g] + val[g] for g in range(8)])
        cvts[7]()
    else:
        run(vreads); run(dmas); run(exps)
        a("s_nop 0")
        run(cvts)
        a("s_nop 1")
    kreads = [kread(a, kslot, s) for s in range(8)] if do_qk else []
    adds = [lambda i=i: a(f"v_add_f32 v{LSUM}, v{LSUM}, v{cur+i}") for i in range(16)]
    mxs = max16(a, nxt) if do_qk else []
    ms = acc_mfmas(a, VF, PB)
    if cfg.x_nopv: ms = [lambda: a("s_nop 7")] * 8
    rd = spread(8, (kreads, 0, 4)) if kreads else [[] for _ in range(8)]
    val = spread(8, (adds, 0, 5), (mxs, 5, 8)) if mxs else spread(8, (adds, 0, 8))
    interleave(a, ms, [rd[g] + val[g] for g in range(8)])
    if do_qk:
        rid = rare_id[0]; rare_id[0] += 1
        a(f"v_cmp_lt_f32 vcc, s{S_THR}, v{MX}")
        a(f"s_cbranch_vccnz L_rare{rid}")
        a.label(f"L_back{rid}")
        rare_blocks.append((rid, nxt))

def rare(a, rid, sb):
    a.label(f"L_rare{rid}")
    a(f"v_mov_b32 v{T1}, v{MX}")
    a("s_nop 1")
    a(f"v_permlane32_swap_b32 v{T1}, v{MX}")
    a("s_nop 1")
    a(f"v_max3_f32 v{MX}, v{MX}, v{T1}, 0")
    a(f"v_exp_f32 v{T2}, -v{MX}")
    a(f"v_sub_f32 v{NEGM}, v{NEGM}, v{MX}")
    for i in range(16): a(f"v_sub_f32 v{sb+i}, v{sb+i}, v{MX}")
    for i in range(1, 16): a(f"v_mov_b32 v{NEGM+i}, v{NEGM}")
    a(f"v_mul_f32 v{LSUM}, v{LSUM}, v{T2}")
    for i in range(64): a(f"v_mul_f32 v{OACC+i}, v{OACC+i}, v{T2}")
    a(f"s_branch L_back{rid}")

U1, U2, U3, U4 = 24, 25, 26, 27
def setup_dma_addrs(a):
    a(f"v_lshrrev_b32 v{U1}, 4, v{LANE}")
    a(f"v_and_b32 v{U2}, 15, v{LANE}")
    a(f"v_lshlrev_b32 v{U3}, 2, v{U1}")
    a(f"v_xor_b32 v{U3}, v{U3}, v{U2}")
    a(f"v_lshlrev_b32 v{U3}, 4, v{U3}")
    a(f"v_lshl_add_u32 v{VOV}, v{U1}, 8, v{U3}")
    a(f"v_lshl_add_u32 v{VOW}, v{U1}, 13, v{U3}")
    a(f"s_lshl_b32 s{S_T0}, s{S_WV}, 16")
    a(f"v_add_u32 v{VOW}, s{S_T0}, v{VOW}")
    a(f"v_lshrrev_b32 v{U3}, 3, v{LANE}")
    a(f"v_and_b32 v{U4}, 7, v{LANE}")
    a(f"v_xor_b32 v{U4}, v{U4}, v{U1}")
    a(f"v_lshlrev_b32 v{VOX}, 10, v{U3}")
    a(f"v_lshl_add_u32 v{VOX}, v{U4}, 4, v{VOX}")
    a(f"s_lshl_b32 s{S_T0}, s{S_WV}, 15")
    a(f"v_add_u32 v{VOX}, s{S_T0}, v{VOX}")
    a(f"v_xor_b32 v{VOX1}, 64, v{VOX}")
def setup_rest(a):
    a(f"s_and_b32 s{S_T0}, s{S_WV}, 1"); a(f"s_lshl_b32 s{S_T0}, s{S_T0}, 3")
    a(f"v_add_u32 v{U3}, s{S_T0}, v{U1}")
    a(f"v_xor_b32 v{VOK0}, v{U3}, v{U2}")
    a(f"v_xor_b32 v{VOK1}, 4, v{VOK0}")
    a(f"v_lshlrev_b32 v{VOK0}, 4, v{VOK0}"); a(f"v_lshlrev_b32 v{VOK1}, 4, v{VOK1}")
    a(f"v_lshl_add_u32 v{VOK0}, v{U1}, 8, v{VOK0}"); a(f"v_lshl_add_u32 v{VOK1}, v{U1}, 8, v{VOK1}")
    a(f"v_and_b32 v{U3}, 31, v{LANE}")
    a(f"v_lshrrev_b32 v{U4}, 5, v{LANE}")
    a(f"v_bfe_u32 v{XRA}, v{LANE}, 1, 3")
    a(f"v_xor_b32 v{XRA}, v{XRA}, v{U4}")
    a(f"v_lshlrev_b32 v{XRA}, 4, v{XRA}")
    a(f"v_lshl_add_u32 v{XRA}, v{U3}, 7, v{XRA}")
    a(f"v_add_u32 v{XRA}, s{S_XB}, v{XRA}")
    for s in range(1, 4): a(f"v_xor_b32 v{XRA+s}, {s<<5}, v{XRA}")
    a(f"v_xor_b32 v{KA}, v{U4}, v{U2}")
    a(f"v_lshlrev_b32 v{KA}, 4, v{KA}")
    a(f"v_lshl_add_u32 v{KA}, v{U3}, 8, v{KA}")
    for s in range(1, 8): a(f"v_xor_b32 v{KA+s}, {s<<5}, v{KA}")
    a(f"v_lshrrev_b32 v{U2}, 2, v{U2}")
    a(f"v_and_b32 v{U1}, 1, v{U1}")
    a(f"v_lshlrev_b32 v{U1}, 5, v{U1}")
    a(f"v_lshl_add_u32 v{U1}, v{U2}, 8, v{U1}")
    a(f"v_lshl_add_u32 v{U1}, v{U2}, 6, v{U1}")
    a(f"v_and_b32 v{U3}, 3, v{LANE}")
    a(f"v_lshl_add_u32 v{VA}, v{U3}, 3, v{U1}")
    a(f"v_lshl_add_u32 v{VA}, v{U4}, 10, v{VA}")
    a(f"v_and_b32 v{U2}, 1, v{U3}"); a(f"v_lshlrev_b32 v{U2}, 4, v{U2}")
    a(f"v_lshrrev_b32 v{U3}, 1, v{U3}"); a(f"v_lshl_add_u32 v{U2}, v{U3}, 3, v{U2}")
    a(f"v_add_u32 v{WA}, v{U2}, v{U1}")
    a(f"v_lshl_add_u32 v{WA}, v{U4}, 11, v{WA}")
    a(f"v_add_u32 v{WA}, {WB}, v{WA}")
    for db in range(1, 4):
        a(f"v_xor_b32 v{VA+db}, {db<<6}, v{VA}"); a(f"v_xor_b32 v{WA+db}, {db<<6}, v{WA}")
    a(f"v_lshlrev_b32 v{VOST}, 4, v{LANE}")
    a(f"v_mov_b32 v{VZ}, 0")

def xreads(a, u, base):
    return [lambda s=s: a.ds(f"ds_read_b128 {vr(base+4*s,4)}, v{XRA+s} offset:{(u%3)*16384}", rng(base+4*s, 4)) for s in range(4)]

def p0_compute(a):
    AB = [VF, KF]
    woff = lambda v: ((v >> 1) % 3) * 16384 + (v & 1) * 8192
    wreads = lambda v: trreads(a, WA, woff(v), AB[v & 1], 4)
    wm = lambda v: acc_mfmas(a, AB[v & 1], XF[(v >> 1) & 1] + 8*(v & 1), first=(v == 0), bneed=True)
    stamp(a, 1)
    a("s_barrier")
    stamp(a, 2)
    run(xreads(a, 0, XF[0])); run(wreads(0))
    for u in range(8):
        a.c(f"q1 step {u}")
        if u in (2, 6): stamp(a, {2: 3, 6: 4}[u])
        interleave(a, wm(2*u), spread(8, (wreads(2*u+1), 0, 5)))
        a.lgkm0()
        a("s_barrier")
        interleave(a, wm(2*u+1), spread(8, (xreads(a, u+1, XF[(u+1) & 1]), 0, 1), (wreads(2*u+2), 1, 7)) if u < 7 else [])

def kc(a, u, dst, sh):
    a(f"s_add_u32 s{dst}, s{S_ROT}, {u}"); a(f"s_and_b32 s{dst}, s{dst}, 7"); a(f"s_lshl_b32 s{dst}, s{dst}, {sh}")
def p0_loader(a):
    A = cfg.ahead
    def pair(u):
        kc(a, u, S_T3, 7)
        for i in range(4):
            a(f"s_add_u32 m0, s{S_XB}, {(u%3)*16384 + i*1024}")
            a(f"s_add_u32 s{S_T0}, s{S_T3}, {i*8192}")
            a.vmem(f"buffer_load_dwordx4 v{VOX1 if i & 1 else VOX}, {sr(S_X,4)}, s{S_T0} offen lds", ("p", u))
        a(f"s_lshl_b32 s{S_T2}, s{S_T3}, 12")
        for i in range(4):
            half, k = i >> 1, i & 1
            a(f"s_add_u32 m0, s{S_WB}, {(u%3)*16384 + half*8192 + k*1024}")
            a(f"s_add_u32 s{S_T0}, s{S_T2}, {(half*32 + k*4)*8192}")
            a.vmem(f"buffer_load_dwordx4 v{VOW}, {sr(S_W,4)}, s{S_T0} offen lds", ("p", u))
    pair(0); pair(1)
    setup_rest(a)
    stamp(a, 1)
    a.vm_wait([("p", 0)]); a("s_barrier")
    stamp(a, 2)
    run(xreads(a, 0, XR))
    pair(2)
    kvs = list(range(16, 18 + A))
    sched = {5: kvs[:3], 6: kvs[3:5], 7: kvs[5:]}
    for u in range(8):
        if u < 7: a.vm_wait([("p", u+1)], also_lgkm0=True)
        else: a.lgkm0()
        a("s_barrier")
        if u < 7: run(xreads(a, u+1, XR + 16*(u+1)))
        if u + 3 < 8: pair(u + 3)
        else:
            for n in sched[u]: run(dma_kv(a, n))
    a.vm_wait([16, 17]); a("s_barrier")

def scale_pack_q(a):
    for db in range(4):
        for i in range(16): a(f"v_mul_f32 v{OACC+16*db+i}, s{S_SC}, v{OACC+16*db+i}")
        for i in range(8): a(f"v_cvt_pk_bf16_f32 v{QF+8*db+i}, v{OACC+16*db+2*i}, v{OACC+16*db+2*i+1}")

def head_prologue(a):
    ms = qk_mfmas(a, SB[0], "0")
    zs = [lambda i=i: a(f"v_mov_b32 v{OACC+i}, 0") for i in range(64)]
    interleave(a, ms, spread(8, (zs, 0, 8)))
    a(f"v_mov_b32 v{LSUM}, 0")
    for s in range(8): kread(a, 1, s)()
    run(max16(a, SB[0]))
    a(f"v_mov_b32 v{T1}, v{MX}")
    a("s_nop 1")
    a(f"v_permlane32_swap_b32 v{T1}, v{MX}")
    a("s_nop 1")
    a(f"v_max_f32 v{MX}, v{MX}, v{T1}")
    for i in range(16): a(f"v_sub_f32 v{SB[0]+i}, v{SB[0]+i}, v{MX}")
    for i in range(16): a(f"v_sub_f32 v{NEGM+i}, 0, v{MX}")

def attention_loop(a):
    A = cfg.ahead
    assert A <= 5
    W = 2*(A-2)
    a("s_setprio 2")
    a(f"s_mov_b32 s{S_CNT}, 8")
    a.raw(".p2align 3")
    a.label("L_loop")
    for j in range(3): body(a, j, [18 + 2*j + A, 19 + 2*j + A], W)
    a(f"s_cmp_eq_u32 s{S_CNT}, 1"); a("s_cbranch_scc1 L_last")
    body(a, 3, [24 + A, 25 + A], W)
    a(f"s_sub_u32 s{S_CNT}, s{S_CNT}, 1"); a("s_branch L_loop")
    a.label("L_last")
    body(a, 3, [24 + A, 25 + A], W, do_qk=False)

def o_pack(a, dst, after_db=None):
    a(f"v_mov_b32 v{T1}, v{LSUM}")
    a("s_nop 1")
    a(f"v_permlane32_swap_b32 v{T1}, v{LSUM}")
    a("s_nop 1")
    a(f"v_add_f32 v{LSUM}, v{LSUM}, v{T1}")
    a(f"v_rcp_f32 v{T2}, v{LSUM}")
    a(f"s_movk_i32 s{S_T0}, 4096")
    a("s_nop 2")
    for db in range(4):
        for i in range(16): a(f"v_mul_f32 v{OACC+16*db+i}, v{OACC+16*db+i}, v{T2}")
        for i in range(8): a(f"v_cvt_pk_bf16_f32 v{dst+8*db+i}, v{OACC+16*db+2*i}, v{OACC+16*db+2*i+1}")
        for sp in range(2):
            ks = 2*db + sp
            so = "0" if ks < 4 else f"s{S_T0}"
            a.vmem(f"buffer_store_dwordx4 {vr(dst+4*ks,4)}, v{VOST}, {sr(S_O,4)}, {so} offen offset:{(ks%4)*1024} sc1", "ost")
        if after_db: after_db(db)

def build_dbg_srd(a):
    d = S_D
    a(f"s_mov_b32 s{d}, s26"); a(f"s_mov_b32 s{d+1}, s27"); a(f"s_mov_b32 s{d+2}, 256"); a(f"s_mov_b32 s{d+3}, 0x20000")
def claim_a(a):
    a(f"s_mov_b32 s{S_T0}, {EP_OFF}")
    a(f"buffer_load_dword v{VFL}, v{VZ}, {sr(S_F,4)}, s{S_T0} offen sc1")
def claim_b(a):
    a(f"v_readfirstlane_b32 s{S_N0}, v{VFL}")
    a("s_nop 0")
    a(f"s_add_u32 s{S_N0}, s{S_N0}, 1")
    a(f"s_max_u32 s{S_N0}, s{S_N0}, 1")
    a(f"v_mov_b32 v{VFL}, s{S_N0}"); a(f"v_mov_b32 v{VFL+1}, 0")
    a("s_mov_b64 exec, 1")
    a(f"buffer_atomic_cmpswap {vr(VFL,2)}, v{VZ}, {sr(S_D,4)}, 0 offen sc0 sc1")
    a("s_mov_b64 exec, -1")
def claim_c(a, tag):
    a(f"v_readfirstlane_b32 s{S_T1}, v{VFL}")
    a("s_nop 0")
    a(f"s_cmp_eq_u32 s{S_T1}, 0")
    a(f"s_cbranch_scc0 L_lost{tag}")
    a(f"v_mov_b32 v{VFL}, s{S_N0}")
    a(f"s_mov_b32 s{S_T0}, {EP_OFF}")
    a("s_mov_b64 exec, 1")
    a(f"buffer_store_dword v{VFL}, v{VZ}, {sr(S_F,4)}, s{S_T0} offen sc1")
    a("s_mov_b64 exec, -1")
    a(f"s_branch L_got{tag}")
    a.label(f"L_lost{tag}")
    a(f"s_mov_b32 s{S_N0}, s{S_T1}")
    a.label(f"L_got{tag}")
def nonce_load(a):
    a.vmem(f"buffer_load_dword v{VNON}, v{VZ}, {sr(S_D,4)}, 0 offen sc1", "non")
def get_nonce(a, tag):
    a(f"v_readfirstlane_b32 s{S_N0}, v{VNON}")
    a("s_nop 0")
    a(f"s_cmp_lg_u32 s{S_N0}, 0")
    a(f"s_cbranch_scc1 L_havenonce{tag}")
    claim_a(a); a("s_waitcnt vmcnt(0)"); claim_b(a); a("s_waitcnt vmcnt(0)"); claim_c(a, tag)
    a.label(f"L_havenonce{tag}")
    a(f"s_xor_b32 s{S_N1}, s{S_N0}, {TAGX}")
    a(f"v_mov_b32 v{VFL}, s{S_N0}"); a(f"v_mov_b32 v{VFL+1}, s{S_N1}")
def flag_store(a, soff):
    a("s_mov_b64 exec, 1")
    a.vmem(f"buffer_store_dwordx2 {vr(VFL,2)}, v{VZ}, {sr(S_F,4)}, s{soff} offen sc1", "flag")
    a("s_mov_b64 exec, -1")
def poll_issue(a, soff, vaddr):
    a.vmem(f"buffer_load_dwordx2 {vr(T2,2)}, v{vaddr}, {sr(S_F,4)}, s{soff} offen sc1", "poll")
def poll_check(a, done_label):
    a(f"v_cmp_ne_u32 vcc, s{S_N0}, v{T2}")
    a(f"v_cmp_ne_u32 s[4:5], s{S_N1}, v{T3}")
    a("s_or_b64 vcc, vcc, s[4:5]")
    a(f"s_cbranch_scc0 {done_label}")
def poll(a, tag, soff, vaddr):
    a(f"s_mov_b32 s{S_T1}, 0x200000")
    a.label(f"L_poll{tag}")
    a(f"buffer_load_dwordx2 {vr(T2,2)}, v{vaddr}, {sr(S_F,4)}, s{soff} offen sc1")
    a("s_waitcnt vmcnt(0)")
    poll_check(a, f"L_polld{tag}")
    a(f"s_sleep {cfg.slp}")
    a(f"s_sub_u32 s{S_T1}, s{S_T1}, 1")
    a(f"s_cmp_lg_u32 s{S_T1}, 0")
    a(f"s_cbranch_scc1 L_poll{tag}")
    a("s_branch L_end")
    a.label(f"L_polld{tag}")

def tick(a, tags=()):
    a.vm_wait(tags, also_lgkm0=True)
    a("s_barrier")
    trace(a)

S_WO = S_W
def wo_setup(a):
    a(f"s_lshl_b32 s{S_T0}, s{S_NB}, 8"); srd(a, S_WO, 12, S_T0, 0); a(f"s_sub_u32 s{S_WO+2}, {4096*1024}, s{S_T0}")
    a(f"v_lshrrev_b32 v{VOW}, 4, v{LANE}")
    a(f"v_mul_u32_u24 v{VOW}, 768, v{VOW}")
    a(f"v_add_u32 v{VOW}, v{VOV}, v{VOW}")
    a(f"s_lshl_b32 s{S_T0}, s{S_WV}, 13")
    a(f"v_add_u32 v{VOW}, s{S_T0}, v{VOW}")
def headoff(a, pos, phase, dst, sh):
    a(f"s_add_u32 s{dst}, s{S_NB}, {pos}"); a(f"s_and_b32 s{dst}, s{dst}, 3"); a(f"s_lshl_b32 s{dst}, s{dst}, 1")
    a(f"s_lshl_b32 s{S_T1}, s{S_XQ}, 3"); a(f"s_add_u32 s{dst}, s{dst}, s{S_T1}")
    if phase: a(f"s_add_u32 s{dst}, s{dst}, 1")
    a(f"s_lshl_b32 s{dst}, s{dst}, {sh}")
def wo_lds(g):
    if g < 28: return WB + (g % 12) * 8192
    return (g - 28) * 8192
def wo_issue(a, g):
    headoff(a, (g >> 2) & 3, g >> 4, S_T2, 17)
    for k in range(2):
        a(f"s_add_u32 m0, s{S_W2K}, {wo_lds(g) + k*1024}")
        a(f"s_add_u32 s{S_T0}, s{S_T2}, {(32*(g&3) + k*4)*1024}")
        a.vmem(f"buffer_load_dwordx4 v{VOW}, {sr(S_WO,4)}, s{S_T0} offen lds", ("wo", g))
def wo_reads(a, g, base):
    ad = wo_lds(g)
    if ad < 65536: return trreads(a, VA, ad, base, 8)
    if ad < 131072: return trreads(a, VB1, ad - 65536, base, 8)
    return trreads(a, VB2, ad - 131072, base, 8)

def g1_aux_r1(a):
    A = cfg.ahead
    a("s_setprio 0")
    build_dbg_srd(a)
    a(f"s_add_u32 s{S_W}, s{S_W}, 256"); a(f"s_addc_u32 s{S_W+1}, s{S_W+1}, 0"); a(f"s_sub_u32 s{S_W+2}, s{S_W+2}, 256")
    def w2(v):
        if (v & 1) == 0: kc(a, v >> 1, S_T2, 19)
        for k in range(2):
            a(f"s_add_u32 m0, s{S_WB}, {(v%6)*8192 + k*1024}")
            a(f"s_add_u32 s{S_T0}, s{S_T2}, {((v&1)*32 + k*4)*8192}")
            a.vmem(f"buffer_load_dwordx4 v{VOW}, {sr(S_W,4)}, s{S_T0} offen lds", ("w2", v))
    LA = 3
    def claimer(part, t):
        a(f"s_cmp_eq_u32 s{S_CL}, 0"); a(f"s_cbranch_scc0 L_nc{t}"); part(); a.label(f"L_nc{t}")
    for t in range(32):
        a.c(f"G1 tick {t}")
        tags = [n for n in range(16, 20 + 2*t)]
        v = t - LA
        if 0 <= v < 16: tags.append(("w2", v))
        if t == 31: tags += [("wo", g) for g in range(12)] + ["non"]
        tick(a, tags)
        if t < 16: w2(t)
        if t == 0: claimer(lambda: claim_a(a), t)
        if t == 4: claimer(lambda: claim_b(a), t)
        if t == 8: claimer(lambda: claim_c(a, "e"), t)
        if 0 <= v < 16 and not cfg.x_noq2:
            run(trreads(a, WA, (v % 6) * 8192, VF, 4))
            run(acc_mfmas(a, VF, XR + 8*v, first=(v == 0)))
        if t == 16 + LA:
            a("s_nop 7"); a("s_nop 1")
            scale_pack_q(a)
            wo_setup(a)
        if 16 + LA <= t < 28 and t - 16 - LA < 12:
            i = t - 16 - LA
            gs = [i] if i < 6 else [6 + 2*(i-6), 7 + 2*(i-6)]
            for g in gs: wo_issue(a, g)
        if t == 28: nonce_load(a)
        if t == 30:
            for s in range(8): kread(a, 79 % 8, s)()
        if t == 31:
            get_nonce(a, "g")
    set_kv_pos(a, 18 + 64 + A)

def g0_aux_r2(a):
    A = cfg.ahead
    S_OO = S_K; VPOLL = 12
    last = 17 + 64 + A
    a.vm = []
    for n in range(last - A + 1, last + 1): a.vm += [n, n]
    a("s_setprio 0")
    TP = cfg.t_poll
    def oload(pos, k, buf, phase):
        if k % 2 == 0:
            headoff(a, pos, phase, S_THR, 13)
            if k >= 4: a(f"s_add_u32 s{S_THR}, s{S_THR}, 4096")
        a.vmem(f"buffer_load_dwordx4 {vr(OB[buf]+4*k,4)}, v{VOST}, {sr(S_OO,4)}, s{S_THR} offen offset:{(k%4)*1024} sc1", ("o", phase, pos, k >> 1))
    buf_of = [0, 1, 2, 0]
    hs_tick = {}
    for g in range(4): hs_tick[33 + g] = g
    for g in range(4, 16): hs_tick[TP + 3 + (g - 4)] = g
    refill = {}
    for g in range(12, 16): refill[34 + (g - 12)] = g
    for g in range(16, 28): refill[50 + (g - 16)] = g
    assert TP + 3 + 11 <= 62 and all(refill_t > [t for t, h in hs_tick.items() if h == g - 12][0] for refill_t, g in refill.items())
    for t in range(32, 64):
        a.c(f"G0 tick {t}")
        tags = [n for n in range(16, 20 + 2*t)]
        g = hs_tick.get(t)
        if g is not None:
            tags.append(("wo", g))
            if g >= 4: tags.append(("o", 0, g >> 2, g & 3))
        if t == 35: tags += ["ost", "non"]
        if t == TP: tags.append("poll")
        tick(a, tags)
        if t == 32:
            build_dbg_srd(a)
            nonce_load(a)
            o_pack(a, OB[0])
            wo_setup(a)
            a(f"s_lshl_b32 s{S_T0}, s{S_XQ}, 6")
            for d in range(4): a(f"v_xor_b32 v{VA+d}, s{S_T0}, v{VA+d}")
            for d in range(4): a(f"v_add_u32 v{VB1+d}, 0x10000, v{VA+d}"); a(f"v_add_u32 v{VB2+d}, 0x20000, v{VA+d}")
            a(f"v_and_b32 v{VPOLL}, 3, v{LANE}"); a(f"v_lshlrev_b32 v{VPOLL}, 3, v{VPOLL}")
            a(f"s_add_u32 s{S_T0}, s{S_GID}, s{S_WV}"); a(f"s_lshl_b32 s{S_T0}, s{S_T0}, 18"); srd(a, S_OO, 28, S_T0, 32*8192)
        if t == 35:
            get_nonce(a, "h")
            flag_store(a, S_FOFF)
        if t == TP - 2: poll_issue(a, S_POFF, VPOLL)
        if t == TP:
            poll_check(a, "L_polldo1")
            poll(a, "o1", S_POFF, VPOLL)
            stamp(a, 7)
        if t in refill: wo_issue(a, refill[t])
        if TP <= t < TP + 12:
            i = t - TP; pos = 1 + i // 4; k = 2 * (i % 4)
            oload(pos, k, buf_of[pos], 0); oload(pos, k + 1, buf_of[pos], 0)
        if g is not None and not cfg.x_noph1:
            run(wo_reads(a, g, VF))
            run(acc_mfmas(a, VF, OB[buf_of[g >> 2]] + 8*(g & 3), first=(g == 0)))
    a("s_setprio 2")
    AB = [VF, KF]
    a(f"s_add_u32 s{S_POFF}, s{S_POFF}, 128")
    a(f"v_add_u32 v{T1}, s{S_W2K}, v{VOST}")
    a("s_waitcnt vmcnt(0)"); a.vm = []
    a("s_barrier")
    stamp(a, 8)
    for k in range(8): a.ds(f"ds_read_b128 {vr(OB[0]+4*k,4)}, v{T1} offset:{(4 + (k>>1))*8192 + (k&1)*1024}", rng(OB[0]+4*k, 4))
    run(wo_reads(a, 16, AB[0]))
    for g in range(28, 32): wo_issue(a, g)
    def hs(g, extra=()):
        nxt = wo_reads(a, g + 1, AB[(g + 1) & 1]) if g < 31 else []
        lists = ([(nxt, 0, 6)] if nxt else []) + ([(list(extra), 0, 8)] if extra else [])
        interleave(a, acc_mfmas(a, AB[g & 1], OB[buf_of[(g >> 2) & 3]] + 8*(g & 3), bneed=True), spread(8, *lists))
    for g in range(16, 20): hs(g)
    poll(a, "o2", S_POFF, VPOLL); a.vm = []
    stamp(a, 9)
    for pos in range(1, 4):
        for k in range(8): oload(pos, k, buf_of[pos], 1)
    for g in range(20, 32):
        a.vm_wait([("o", 1, (g >> 2) & 3, g & 3)])
        if g == 27: a("s_barrier")
        hs(g)
    stamp(a, 3)
    S_P = S_V; S_OUT = S_O; VOUT = 13
    a(f"s_add_u32 s{S_T2}, s{S_GID}, s{S_NB}")
    a(f"s_lshl_b32 s{S_T0}, s{S_T2}, 17"); a(f"s_add_u32 s{S_T0}, s{S_T0}, {WS_P}"); srd(a, S_P, 28, S_T0, 131072)
    a(f"s_lshl_b32 s{S_SC}, s{S_XQ}, 13"); a(f"s_add_u32 s{S_SC}, s{S_SC}, s{S_W2K}")
    PK = 184
    a("s_nop 3")
    for d in range(1, 4):
        for i in range(8): a(f"v_cvt_pk_bf16_f32 v{PK+8*d+i}, v{OACC+16*d+2*i}, v{OACC+16*d+2*i+1}")
        a(f"s_xor_b32 s{S_T0}, s{S_XQ}, {d}"); a(f"s_lshl_b32 s{S_T0}, s{S_T0}, 15"); a(f"s_add_u32 s{S_T0}, s{S_T0}, s{S_SC}")
        for k in range(2): a(f"buffer_store_dwordx4 {vr(PK+8*d+4*k,4)}, v{VOST}, {sr(S_P,4)}, s{S_T0} offen offset:{k*1024} sc1")
    a(f"s_lshl_b32 s{S_T3}, s{S_T2}, 7"); a(f"s_lshl_b32 s{S_T0}, s{S_WV}, 5"); a(f"s_add_u32 s{S_T3}, s{S_T3}, s{S_T0}"); a(f"s_add_u32 s{S_T3}, s{S_T3}, {FP_OFF}")
    a(f"s_lshl_b32 s{S_T2}, s{S_XQ}, 3"); a(f"s_add_u32 s{S_T2}, s{S_T2}, s{S_T3}")
    a(f"s_lshl_b32 s{S_T1}, s{S_B}, 2"); a(f"s_add_u32 s{S_T1}, s{S_T1}, s{S_WV}"); a(f"s_lshl_b32 s{S_T1}, s{S_T1}, 16")
    a(f"s_lshl_b32 s{S_THR}, s{S_BR}, 10"); a(f"s_add_u32 s{S_T1}, s{S_T1}, s{S_THR}")
    a(f"s_lshl_b32 s{S_THR}, s{S_NB}, 8"); a(f"s_add_u32 s{S_T1}, s{S_T1}, s{S_THR}")
    a(f"s_lshl_b32 s{S_THR}, s{S_XQ}, 6"); a(f"s_add_u32 s{S_T1}, s{S_T1}, s{S_THR}")
    srd(a, S_OUT, 24, S_T1, 0); a(f"s_sub_u32 s{S_OUT+2}, {8*128*2048}, s{S_T1}")
    a(f"v_and_b32 v{T1}, 31, v{LANE}"); a(f"v_lshlrev_b32 v{VOUT}, 11, v{T1}")
    a(f"v_lshrrev_b32 v{T1}, 5, v{LANE}"); a(f"v_lshl_add_u32 v{VOUT}, v{T1}, 4, v{VOUT}")
    a("s_waitcnt vmcnt(0)")
    flag_store(a, S_T2)
    poll(a, "p", S_T3, VPOLL)
    stamp(a, 4)
    a(f"s_lshl_b32 s{S_SC}, s{S_XQ}, 15"); a(f"s_add_u32 s{S_SC}, s{S_SC}, s{S_W2K}")
    for d in range(1, 4):
        a(f"s_xor_b32 s{S_T0}, s{S_XQ}, {d}"); a(f"s_lshl_b32 s{S_T0}, s{S_T0}, 13"); a(f"s_add_u32 s{S_T0}, s{S_T0}, s{S_SC}")
        for k in range(2): a(f"buffer_load_dwordx4 {vr(PK+8*d+4*k,4)}, v{VOST}, {sr(S_P,4)}, s{S_T0} offen offset:{k*1024} sc1")
    for d in range(1, 4):
        a(f"s_waitcnt vmcnt({2*(3-d)})")
        for i in range(8):
            a(f"v_lshlrev_b32 v{T1}, 16, v{PK+8*d+i}")
            a(f"v_and_b32 v{T2}, 0xffff0000, v{PK+8*d+i}")
            a(f"v_add_f32 v{OACC+2*i}, v{OACC+2*i}, v{T1}")
            a(f"v_add_f32 v{OACC+2*i+1}, v{OACC+2*i+1}, v{T2}")
    for i in range(8): a(f"v_cvt_pk_bf16_f32 v{PK+i}, v{OACC+2*i}, v{OACC+2*i+1}")
    a("s_nop 1")
    a(f"v_permlane32_swap_b32 v{PK}, v{PK+2}"); a(f"v_permlane32_swap_b32 v{PK+1}, v{PK+3}")
    a(f"v_permlane32_swap_b32 v{PK+4}, v{PK+6}"); a(f"v_permlane32_swap_b32 v{PK+5}, v{PK+7}")
    a("s_nop 1")
    a(f"buffer_store_dwordx4 {vr(PK,4)}, v{VOUT}, {sr(S_OUT,4)}, 0 offen")
    a(f"buffer_store_dwordx4 {vr(PK+4,4)}, v{VOUT}, {sr(S_OUT,4)}, 0 offen offset:32")

def g1_finish(a):
    a("s_waitcnt vmcnt(0)")
    a(f"v_add_u32 v{T3}, s{S_W2K}, v{VOST}")
    def after(db):
        for sp in range(2): a(f"ds_write_b128 v{T3}, {vr(QF+8*db+4*sp,4)} offset:{(4+db)*8192 + sp*1024}")
    o_pack(a, QF, after)
    a("s_waitcnt lgkmcnt(0)")
    a("s_barrier")
    a(f"s_add_u32 s{S_FOFF}, s{S_FOFF}, 128")
    a("s_waitcnt vmcnt(0)")
    flag_store(a, S_FOFF)

def gen_kernel(a):
    name = KN + "_kernel"
    A = cfg.ahead
    a.raw(".p2align 8"); a.raw(f".type {name},@function"); a.label(name)
    a("s_cmp_ge_u32 s2, 256"); a("s_cbranch_scc1 L_end")
    a("s_load_dwordx16 s[4:19], s[0:1], 0")
    a("s_load_dwordx4 s[20:23], s[0:1], 64")
    a("s_load_dwordx4 s[24:27], s[0:1], 80")
    a("s_load_dwordx2 s[28:29], s[0:1], 96")
    a(f"v_lshrrev_b32 v{U1}, 6, v0")
    a(f"v_and_b32 v{LANE}, 63, v0")
    a(f"v_readfirstlane_b32 s{S_WV}, v{U1}")
    a(f"s_bfe_u32 s{S_BR}, s2, 0x10002")
    a(f"s_and_b32 s{S_XQ}, s2, 3")
    a(f"s_bfe_u32 s{S_NB}, s2, 0x20003")
    a(f"s_bfe_u32 s{S_B}, s2, 0x30005")
    a(f"s_lshr_b32 s{S_GRP}, s{S_WV}, 2"); a(f"s_and_b32 s{S_WV}, s{S_WV}, 3")
    a(f"s_lshl_b32 s{S_H}, s{S_XQ}, 2"); a(f"s_add_u32 s{S_H}, s{S_H}, s{S_NB}"); a(f"s_lshl_b32 s{S_H}, s{S_H}, 1")
    if cfg.rot:
        a(f"s_lshl_b32 s{S_ROT}, s{S_NB}, 1"); a(f"s_add_u32 s{S_ROT}, s{S_ROT}, s{S_B}")
    else:
        a(f"s_mov_b32 s{S_ROT}, 0")
    a(f"s_lshl_b32 s{S_W2K}, s{S_WV}, 11")
    a(f"s_lshl_b32 s{S_XB}, s{S_WV}, 12"); a(f"s_add_u32 s{S_XB}, s{S_XB}, {XB}")
    setup_dma_addrs(a)
    a("s_waitcnt lgkmcnt(0)")
    zero_stamps(a); stamp(a, 0); cstamp(a, 10)
    a(f"s_cmp_eq_u32 s{S_BR}, 0")
    for i in range(5): a(f"s_cselect_b64 {sr(4+2*i,2)}, {sr(4+2*i,2)}, {sr(14+2*i,2)}")
    a(f"s_lshl_b32 s{S_T0}, s{S_B}, 17"); srd(a, S_X, 4, S_T0, 131072)
    a(f"s_lshl_b32 s{S_T0}, s{S_H}, 8"); srd(a, S_W, 10, S_T0, 0)
    a(f"s_sub_u32 s{S_W+2}, {512*8192}, s{S_T0}")
    a(f"s_add_u32 s{S_WB}, s{S_W2K}, {WB}")
    def rest_scalars():
        a(f"s_lshl_b32 s{S_T0}, s{S_B}, 5"); a(f"s_add_u32 s{S_T0}, s{S_T0}, s{S_H}"); a(f"s_lshl_b32 s{S_T0}, s{S_T0}, 18")
        srd(a, S_K, 6, S_T0, 524288); srd(a, S_V, 8, S_T0, 524288)
        a(f"s_lshl_b32 s{S_GID}, s{S_BR}, 3"); a(f"s_add_u32 s{S_GID}, s{S_GID}, s{S_B}"); a(f"s_lshl_b32 s{S_GID}, s{S_GID}, 2")
        a(f"s_add_u32 s{S_T0}, s{S_GID}, s{S_WV}"); a(f"s_lshl_b32 s{S_T0}, s{S_T0}, 5"); a(f"s_add_u32 s{S_T0}, s{S_T0}, s{S_H}")
        a(f"s_add_u32 s{S_T0}, s{S_T0}, s{S_GRP}"); a(f"s_lshl_b32 s{S_T0}, s{S_T0}, 13")
        srd(a, S_O, 28, S_T0, 8192)
        a(f"s_add_u32 s{S_F}, s28, {WS_F}"); a(f"s_addc_u32 s{S_F+1}, s29, 0"); a(f"s_mov_b32 s{S_F+2}, {F_BYTES}"); a(f"s_mov_b32 s{S_F+3}, 0x20000")
        a(f"s_add_u32 s{S_POFF}, s{S_GID}, s{S_XQ}"); a(f"s_lshl_b32 s{S_POFF}, s{S_POFF}, 3"); a(f"s_add_u32 s{S_POFF}, s{S_POFF}, s{S_WV}"); a(f"s_lshl_b32 s{S_POFF}, s{S_POFF}, 5")
        a(f"s_lshl_b32 s{S_FOFF}, s{S_NB}, 3"); a(f"s_add_u32 s{S_FOFF}, s{S_FOFF}, s{S_POFF}")
        a(f"s_lshl_b32 s{S_CL}, s2, 2"); a(f"s_add_u32 s{S_CL}, s{S_CL}, s{S_WV}")
        a(f"s_mov_b32 s{S_THR}, 0x41000000")
        sc = math.log2(math.e) / math.sqrt(128.0)
        a(f"s_mov_b32 s{S_SC}, 0x{struct.unpack('<I', struct.pack('<f', sc))[0]:08x}")
        if cfg.stamp: a(f"s_mov_b32 s{S_TRI}, 0")
    rest_scalars()
    a(f"s_cmp_lg_u32 s{S_GRP}, 0"); a("s_cbranch_scc1 L_g1")
    setup_rest(a)
    set_kv_pos(a, 18 + A)
    p0_compute(a)
    a("s_nop 7"); a("s_nop 3")
    scale_pack_q(a)
    a("s_barrier")
    for s in range(8): kread(a, 0, s)()
    a("s_branch L_att")
    a.label("L_g1")
    a.lds = []; a.vm = []
    a("s_setprio 3")
    set_kv_pos(a, 16)
    p0_loader(a)
    g1_aux_r1(a)
    a.lds = [set(rng(KF+4*s, 4)) for s in range(8)]
    a.label("L_att")
    head_prologue(a)
    stamp(a, 5); cstamp(a, 11)
    attention_loop(a)
    stamp(a, 6)
    a(f"s_cmp_lg_u32 s{S_GRP}, 0"); a("s_cbranch_scc1 L_g1fin")
    g0_aux_r2(a)
    a("s_branch L_fin")
    a.label("L_g1fin")
    g1_finish(a)
    a.label("L_fin")
    dump_stamps(a)
    a.label("L_end")
    a("s_endpgm")
    for rid, sb in rare_blocks: rare(a, rid, sb)

def gen(**kw):
    for k, v in kw.items(): setattr(cfg, k, v)
    rare_id[0] = 0; rare_blocks.clear()
    a = Asm()
    name = KN + "_kernel"
    a.raw("; @launch grid=(256,1,1) block=(512,1,1) lds=163840")
    a.raw('.amdgcn_target "amdgcn-amd-amdhsa--gfx950"'); a.raw(".text")
    a.raw(f".globl {name}")
    gen_kernel(a)
    a.raw('.section .rodata,"a"'); a.raw(".p2align 6")
    a.raw(f".amdhsa_kernel {name}")
    for d in ["next_free_vgpr 256", "next_free_sgpr 102", "accum_offset 256", "group_segment_fixed_size 0", "kernarg_size 104",
              "user_sgpr_count 2", "user_sgpr_kernarg_segment_ptr 1", "system_sgpr_workgroup_id_x 1"]:
        a.raw("  .amdhsa_" + d)
    a.raw(".end_amdhsa_kernel")
    return a.text()

if __name__ == "__main__":
    open(f"cdna_kernels/{KN}.s", "w").write(gen())
    open("k6_a5.s", "w").write(gen(stamp=True, ahead=5))
    open("k6_noq2.s", "w").write(gen(stamp=True, ahead=5, x_noq2=True, x_noph1=True))
    open("k6_nopv.s", "w").write(gen(stamp=True, ahead=5, x_noq2=False, x_noph1=False, x_nopv=True))
```

```python
import sys, math, struct
sys.path.insert(0, "gen")
from emit import *
KN = "concat_heads__mha_block_cached__gqa_block_cached__near_ridge"

class Cfg:
    nt_kv = True
    stamp = False
    ahead = 5
    rot = True
    slp = 2
    x_cal = 0
    x_noq2 = False
    x_nopv = False
    x_noph1 = False
    t_poll = 40
cfg = Cfg()

MFMA = "v_mfma_f32_32x32x16_bf16"
KA = 0; VA = 8
VOK0, VOK1, VOV = 12, 13, 14
LSUM = 15; MX = 16; T1 = 17; T2 = 18; T3 = 19
XRA = 15
VOX1 = 19
LANE = 20; VOW = 21; VOX = 22; VOST = 23
VF = 24; OACC = 56; QF = 120; KF = 152
SB = [184, 200]; NEGM = 216; PB = 232
XF = [184, 200]
XR = 120
WA = 248
VFL = 252; VZ = 254; VTR = 255
VNON = 22
OB = [120, 184, 216]
VB1 = 0; VB2 = 4
S_K, S_V, S_X, S_W, S_O = 32, 36, 40, 44, 48
S_WV, S_BR, S_H, S_B, S_W2K, S_OFFK, S_OFFV, S_CNT, S_T0, S_THR, S_SC, S_T1 = 52, 53, 54, 55, 56, 57, 58, 59, 60, 61, 62, 63
S_ROT, S_T2, S_T3 = 30, 31, 3
S_GRP, S_XQ, S_NB = 96, 97, 98
S_N0, S_N1 = 99, 100
S_XB = 101
S_F = 16
S_FOFF = 20; S_TRI = 22; S_GID = 21; S_CL = 14; S_WB = 15; S_POFF = 23
S_D = S_X
WS_P = 0x1000000
WS_F = 0x1800000
FO_BYTES = 64 * 256
FP_OFF = FO_BYTES
EP_OFF = FP_OFF + 64 * 128
F_BYTES = EP_OFF + 128
TAGX = 0x5bd1e995
WB = 65536
XB = WB + 49152

NST = 14
def stamp(a, k):
    if cfg.stamp: a(f"s_memrealtime {sr(64+2*k,2)}")
def cstamp(a, k):
    if cfg.stamp: a(f"s_memtime {sr(64+2*k,2)}")
def trace(a):
    if cfg.stamp:
        a(f"s_mov_b32 m0, s{S_TRI}"); a("s_nop 0"); a(f"v_writelane_b32 v{VTR}, s92, m0"); a(f"s_add_u32 s{S_TRI}, s{S_TRI}, 1"); a("s_memrealtime s[92:93]")
def dump_stamps(a):
    if not cfg.stamp: return
    t0 = S_T0
    a("s_waitcnt vmcnt(0) lgkmcnt(0)")
    a(f"s_mov_b32 m0, s{S_TRI}"); a("s_nop 0"); a(f"v_writelane_b32 v{VTR}, s92, m0")
    stamp(a, NST-1); cstamp(a, 12)
    a(f"s_getreg_b32 s92, hwreg(HW_REG_XCC_ID)"); a(f"s_getreg_b32 s93, hwreg(HW_REG_HW_ID)")
    a("s_waitcnt lgkmcnt(0)")
    a(f"s_add_u32 s28, s28, 0x2000000"); a("s_addc_u32 s29, s29, 0"); a("s_mov_b32 s30, 0x100000"); a("s_mov_b32 s31, 0x20000")
    for k in range(NST): a(f"v_mov_b32 v{32+k}, s{64+2*k}")
    a("v_mov_b32 v46, s92"); a("v_mov_b32 v47, s93")
    a(f"s_lshl_b32 s{t0}, s{S_GRP}, 8"); a(f"s_add_u32 s{t0}, s{t0}, s2")
    a(f"s_lshl_b32 s{t0}, s{t0}, 2"); a(f"s_add_u32 s{t0}, s{t0}, s{S_WV}"); a(f"s_lshl_b32 s{t0}, s{t0}, 6"); a(f"v_mov_b32 v30, s{t0}")
    a(f"s_lshl_b32 s{t0}, s{t0}, 2"); a(f"s_add_u32 s{t0}, s{t0}, 0x40000"); a(f"v_lshlrev_b32 v31, 2, v{LANE}")
    a(f"buffer_store_dword v{VTR}, v31, s[28:31], s{t0} offen")
    a(f"v_cmp_eq_u32 vcc, 0, v{LANE}"); a("s_and_saveexec_b64 s[94:95], vcc")
    for k in range(4): a(f"buffer_store_dwordx4 v[{32+4*k}:{35+4*k}], v30, s[28:31], 0 offen offset:{16*k}")
def zero_stamps(a):
    if cfg.stamp:
        a("s_mov_b32 s92, 0"); a(f"v_mov_b32 v{VTR}, 0")
        for k in range(NST): a(f"s_mov_b64 {sr(64+2*k,2)}, 0")

def srd(a, d, plo, off_sgpr, nbytes):
    a(f"s_add_u32 s{d}, s{plo}, s{off_sgpr}")
    a(f"s_addc_u32 s{d+1}, s{plo+1}, 0")
    a(f"s_mov_b32 s{d+2}, {nbytes}")
    a(f"s_mov_b32 s{d+3}, 0x20000")

def interleave(a, mfmas, fillers):
    for i, m in enumerate(mfmas):
        m()
        if i < len(fillers):
            for f in fillers[i]: f()
def spread(nslots, *lists):
    out = [[] for _ in range(nslots)]
    for (lst, lo, hi) in lists:
        n = len(lst)
        for i, x in enumerate(lst):
            out[lo + (i * (hi - lo)) // n].append(x)
    return out
def run(ops):
    for o in ops: o()

def is_k(n): return (n < 18) or (n % 2 == 1)
def kv_index_before(n):
    ks = sum(1 for m in range(16, n) if is_k(m)); return ks, (n - 16) - ks
def dma_kv(a, n):
    slot = n % 8
    fl = " nt" if cfg.nt_kv else ""
    v0, v1, s, so = (VOK0, VOK1, S_K, S_OFFK) if is_k(n) else (VOV, VOV, S_V, S_OFFV)
    return [lambda: (a(f"s_add_u32 m0, s{S_W2K}, {slot*8192}"), a("s_nop 0"),
                     a.vmem(f"buffer_load_dwordx4 v{v0}, {sr(s,4)}, s{so} offen{fl} lds", n)),
            lambda: (a.vmem(f"buffer_load_dwordx4 v{v1}, {sr(s,4)}, s{so} offen offset:1024{fl} lds", n),
                     a(f"s_add_u32 s{so}, s{so}, 8192"))]
def set_kv_pos(a, n):
    k, v = kv_index_before(n)
    a(f"s_add_u32 s{S_OFFK}, s{S_W2K}, {k*8192}"); a(f"s_add_u32 s{S_OFFV}, s{S_W2K}, {v*8192}")

def kread(a, slot, s):
    return lambda: a.ds(f"ds_read_b128 {vr(KF+4*s,4)}, v{KA+s} offset:{slot*8192}", rng(KF+4*s, 4))
def trreads(a, areg, off, base, pstep):
    ops = []
    for sp in range(2):
        for db in range(4):
            for p in range(2):
                r = base + 4*(4*sp+db) + 2*p
                ops.append(lambda r=r, sp=sp, db=db, p=p: a.ds(f"ds_read_b64_tr_b16 {vr(r,2)}, v{areg+db} offset:{off + (16*sp+pstep*p)*256}", rng(r, 2)))
    return ops
def qk_mfmas(a, sbuf, first_c):
    ms = []
    for s in range(8):
        def m(s=s):
            a.need(rng(KF+4*s, 4))
            c = first_c if s == 0 else vr(sbuf, 16)
            a(f"{MFMA} {vr(sbuf,16)}, {vr(KF+4*s,4)}, {vr(QF+4*s,4)}, {c}")
        ms.append(m)
    return ms
def acc_mfmas(a, af, bf, first=False, bneed=False):
    ms = []
    for sp in range(2):
        for db in range(4):
            def m(sp=sp, db=db):
                f = af + 4*(4*sp+db)
                a.need(list(rng(f, 4)) + (list(rng(bf+4*sp, 4)) if bneed else []))
                c = "0" if (first and sp == 0) else vr(OACC+16*db, 16)
                a(f"{MFMA} {vr(OACC+16*db,16)}, {vr(f,4)}, {vr(bf+4*sp,4)}, {c}")
            ms.append(m)
    return ms
def max16(a, sb):
    ops = [lambda: a(f"v_max3_f32 v{MX}, v{sb}, v{sb+1}, v{sb+2}")]
    for i in range(3, 15, 2):
        ops.append(lambda i=i: a(f"v_max3_f32 v{MX}, v{MX}, v{sb+i}, v{sb+i+1}"))
    ops.append(lambda: a(f"v_max_f32 v{MX}, v{MX}, v{sb+15}"))
    return ops

rare_id = [0]
rare_blocks = []
def body(a, j, dmas_n, vmwait, do_qk=True):
    cur = SB[j & 1]; nxt = SB[(j + 1) & 1]
    vslot = (18 + 2*j) % 8; kslot = (19 + 2*j) % 8
    a.c(f"---- body phase {j}")
    a(f"s_waitcnt vmcnt({vmwait}) lgkmcnt(0)"); a.lds = []
    a("s_barrier")
    trace(a)
    vreads = trreads(a, VA, vslot*8192, VF, 8)
    exps = [lambda i=i: a(f"v_exp_f32 v{cur+i}, v{cur+i}") for i in range(16)]
    cvts = [lambda i=i: a(f"v_cvt_pk_bf16_f32 v{PB+i}, v{cur+2*i}, v{cur+2*i+1}") for i in range(8)]
    dmas = []
    for n in dmas_n: dmas += dma_kv(a, n)
    if do_qk:
        ms = qk_mfmas(a, nxt, vr(NEGM, 16))
        val = [[exps[0], exps[1], exps[2]], [exps[3], exps[4], cvts[0]], [exps[5], exps[6], cvts[1]], [exps[7], exps[8], cvts[2]],
               [exps[9], exps[10], cvts[3]], [exps[11], exps[12], cvts[4]], [exps[13], exps[14], cvts[5]], [exps[15], cvts[6]]]
        rd = spread(8, (vreads, 0, 6))
        dm = spread(8, (dmas, 0, 4))
        interleave(a, ms, [dm[g] + rd[g] + val[g] for g in range(8)])
        cvts[7]()
    else:
        run(vreads); run(dmas); run(exps)
        a("s_nop 0")
        run(cvts)
        a("s_nop 1")
    kreads = [kread(a, kslot, s) for s in range(8)] if do_qk else []
    adds = [lambda i=i: a(f"v_add_f32 v{LSUM}, v{LSUM}, v{cur+i}") for i in range(16)]
    mxs = max16(a, nxt) if do_qk else []
    ms = acc_mfmas(a, VF, PB)
    if cfg.x_nopv: ms = [lambda: a("s_nop 7")] * 8
    rd = spread(8, (kreads, 0, 4)) if kreads else [[] for _ in range(8)]
    val = spread(8, (adds, 0, 5), (mxs, 5, 8)) if mxs else spread(8, (adds, 0, 8))
    interleave(a, ms, [rd[g] + val[g] for g in range(8)])
    if do_qk:
        rid = rare_id[0]; rare_id[0] += 1
        a(f"v_cmp_lt_f32 vcc, s{S_THR}, v{MX}")
        a(f"s_cbranch_vccnz L_rare{rid}")
        a.label(f"L_back{rid}")
        rare_blocks.append((rid, nxt))

def rare(a, rid, sb):
    a.label(f"L_rare{rid}")
    a(f"v_mov_b32 v{T1}, v{MX}")
    a("s_nop 1")
    a(f"v_permlane32_swap_b32 v{T1}, v{MX}")
    a("s_nop 1")
    a(f"v_max3_f32 v{MX}, v{MX}, v{T1}, 0")
    a(f"v_exp_f32 v{T2}, -v{MX}")
    a(f"v_sub_f32 v{NEGM}, v{NEGM}, v{MX}")
    for i in range(16): a(f"v_sub_f32 v{sb+i}, v{sb+i}, v{MX}")
    for i in range(1, 16): a(f"v_mov_b32 v{NEGM+i}, v{NEGM}")
    a(f"v_mul_f32 v{LSUM}, v{LSUM}, v{T2}")
    for i in range(64): a(f"v_mul_f32 v{OACC+i}, v{OACC+i}, v{T2}")
    a(f"s_branch L_back{rid}")

U1, U2, U3, U4 = 24, 25, 26, 27
def setup_dma_addrs(a):
    a(f"v_lshrrev_b32 v{U1}, 4, v{LANE}")
    a(f"v_and_b32 v{U2}, 15, v{LANE}")
    a(f"v_lshlrev_b32 v{U3}, 2, v{U1}")
    a(f"v_xor_b32 v{U3}, v{U3}, v{U2}")
    a(f"v_lshlrev_b32 v{U3}, 4, v{U3}")
    a(f"v_lshl_add_u32 v{VOV}, v{U1}, 8, v{U3}")
    a(f"v_lshl_add_u32 v{VOW}, v{U1}, 13, v{U3}")
    a(f"s_lshl_b32 s{S_T0}, s{S_WV}, 16")
    a(f"v_add_u32 v{VOW}, s{S_T0}, v{VOW}")
    a(f"v_lshrrev_b32 v{U3}, 3, v{LANE}")
    a(f"v_and_b32 v{U4}, 7, v{LANE}")
    a(f"v_xor_b32 v{U4}, v{U4}, v{U1}")
    a(f"v_lshlrev_b32 v{VOX}, 10, v{U3}")
    a(f"v_lshl_add_u32 v{VOX}, v{U4}, 4, v{VOX}")
    a(f"s_lshl_b32 s{S_T0}, s{S_WV}, 15")
    a(f"v_add_u32 v{VOX}, s{S_T0}, v{VOX}")
    a(f"v_xor_b32 v{VOX1}, 64, v{VOX}")
def setup_rest(a):
    a(f"s_and_b32 s{S_T0}, s{S_WV}, 1"); a(f"s_lshl_b32 s{S_T0}, s{S_T0}, 3")
    a(f"v_add_u32 v{U3}, s{S_T0}, v{U1}")
    a(f"v_xor_b32 v{VOK0}, v{U3}, v{U2}")
    a(f"v_xor_b32 v{VOK1}, 4, v{VOK0}")
    a(f"v_lshlrev_b32 v{VOK0}, 4, v{VOK0}"); a(f"v_lshlrev_b32 v{VOK1}, 4, v{VOK1}")
    a(f"v_lshl_add_u32 v{VOK0}, v{U1}, 8, v{VOK0}"); a(f"v_lshl_add_u32 v{VOK1}, v{U1}, 8, v{VOK1}")
    a(f"v_and_b32 v{U3}, 31, v{LANE}")
    a(f"v_lshrrev_b32 v{U4}, 5, v{LANE}")
    a(f"v_bfe_u32 v{XRA}, v{LANE}, 1, 3")
    a(f"v_xor_b32 v{XRA}, v{XRA}, v{U4}")
    a(f"v_lshlrev_b32 v{XRA}, 4, v{XRA}")
    a(f"v_lshl_add_u32 v{XRA}, v{U3}, 7, v{XRA}")
    a(f"v_add_u32 v{XRA}, s{S_XB}, v{XRA}")
    for s in range(1, 4): a(f"v_xor_b32 v{XRA+s}, {s<<5}, v{XRA}")
    a(f"v_xor_b32 v{KA}, v{U4}, v{U2}")
    a(f"v_lshlrev_b32 v{KA}, 4, v{KA}")
    a(f"v_lshl_add_u32 v{KA}, v{U3}, 8, v{KA}")
    for s in range(1, 8): a(f"v_xor_b32 v{KA+s}, {s<<5}, v{KA}")
    a(f"v_lshrrev_b32 v{U2}, 2, v{U2}")
    a(f"v_and_b32 v{U1}, 1, v{U1}")
    a(f"v_lshlrev_b32 v{U1}, 5, v{U1}")
    a(f"v_lshl_add_u32 v{U1}, v{U2}, 8, v{U1}")
    a(f"v_lshl_add_u32 v{U1}, v{U2}, 6, v{U1}")
    a(f"v_and_b32 v{U3}, 3, v{LANE}")
    a(f"v_lshl_add_u32 v{VA}, v{U3}, 3, v{U1}")
    a(f"v_lshl_add_u32 v{VA}, v{U4}, 10, v{VA}")
    a(f"v_and_b32 v{U2}, 1, v{U3}"); a(f"v_lshlrev_b32 v{U2}, 4, v{U2}")
    a(f"v_lshrrev_b32 v{U3}, 1, v{U3}"); a(f"v_lshl_add_u32 v{U2}, v{U3}, 3, v{U2}")
    a(f"v_add_u32 v{WA}, v{U2}, v{U1}")
    a(f"v_lshl_add_u32 v{WA}, v{U4}, 11, v{WA}")
    a(f"v_add_u32 v{WA}, {WB}, v{WA}")
    for db in range(1, 4):
        a(f"v_xor_b32 v{VA+db}, {db<<6}, v{VA}"); a(f"v_xor_b32 v{WA+db}, {db<<6}, v{WA}")
    a(f"v_lshlrev_b32 v{VOST}, 4, v{LANE}")
    a(f"v_mov_b32 v{VZ}, 0")

def xreads(a, u, base):
    return [lambda s=s: a.ds(f"ds_read_b128 {vr(base+4*s,4)}, v{XRA+s} offset:{(u%3)*16384}", rng(base+4*s, 4)) for s in range(4)]

def p0_compute(a):
    AB = [VF, KF]
    woff = lambda v: ((v >> 1) % 3) * 16384 + (v & 1) * 8192
    wreads = lambda v: trreads(a, WA, woff(v), AB[v & 1], 4)
    wm = lambda v: acc_mfmas(a, AB[v & 1], XF[(v >> 1) & 1] + 8*(v & 1), first=(v == 0), bneed=True)
    stamp(a, 1)
    a("s_barrier")
    stamp(a, 2)
    run(xreads(a, 0, XF[0])); run(wreads(0))
    for u in range(8):
        a.c(f"q1 step {u}")
        if u in (2, 6): stamp(a, {2: 3, 6: 4}[u])
        interleave(a, wm(2*u), spread(8, (wreads(2*u+1), 0, 5)))
        a.lgkm0()
        a("s_barrier")
        interleave(a, wm(2*u+1), spread(8, (xreads(a, u+1, XF[(u+1) & 1]), 0, 1), (wreads(2*u+2), 1, 7)) if u < 7 else [])

def kc(a, u, dst, sh):
    a(f"s_add_u32 s{dst}, s{S_ROT}, {u}"); a(f"s_and_b32 s{dst}, s{dst}, 7"); a(f"s_lshl_b32 s{dst}, s{dst}, {sh}")
def p0_loader(a):
    A = cfg.ahead
    def pair(u):
        kc(a, u, S_T3, 7)
        for i in range(4):
            a(f"s_add_u32 m0, s{S_XB}, {(u%3)*16384 + i*1024}")
            a(f"s_add_u32 s{S_T0}, s{S_T3}, {i*8192}")
            a.vmem(f"buffer_load_dwordx4 v{VOX1 if i & 1 else VOX}, {sr(S_X,4)}, s{S_T0} offen lds", ("p", u))
        a(f"s_lshl_b32 s{S_T2}, s{S_T3}, 12")
        for i in range(4):
            half, k = i >> 1, i & 1
            a(f"s_add_u32 m0, s{S_WB}, {(u%3)*16384 + half*8192 + k*1024}")
            a(f"s_add_u32 s{S_T0}, s{S_T2}, {(half*32 + k*4)*8192}")
            a.vmem(f"buffer_load_dwordx4 v{VOW}, {sr(S_W,4)}, s{S_T0} offen lds", ("p", u))
    pair(0); pair(1)
    setup_rest(a)
    stamp(a, 1)
    a.vm_wait([("p", 0)]); a("s_barrier")
    stamp(a, 2)
    run(xreads(a, 0, XR))
    pair(2)
    kvs = list(range(16, 18 + A))
    sched = {5: kvs[:3], 6: kvs[3:5], 7: kvs[5:]}
    for u in range(8):
        if u < 7: a.vm_wait([("p", u+1)], also_lgkm0=True)
        else: a.lgkm0()
        a("s_barrier")
        if u < 7: run(xreads(a, u+1, XR + 16*(u+1)))
        if u + 3 < 8: pair(u + 3)
        else:
            for n in sched[u]: run(dma_kv(a, n))
    a.vm_wait([16, 17]); a("s_barrier")

def scale_pack_q(a):
    for db in range(4):
        for i in range(16): a(f"v_mul_f32 v{OACC+16*db+i}, s{S_SC}, v{OACC+16*db+i}")
        for i in range(8): a(f"v_cvt_pk_bf16_f32 v{QF+8*db+i}, v{OACC+16*db+2*i}, v{OACC+16*db+2*i+1}")

def head_prologue(a):
    ms = qk_mfmas(a, SB[0], "0")
    zs = [lambda i=i: a(f"v_mov_b32 v{OACC+i}, 0") for i in range(64)]
    interleave(a, ms, spread(8, (zs, 0, 8)))
    a(f"v_mov_b32 v{LSUM}, 0")
    for s in range(8): kread(a, 1, s)()
    run(max16(a, SB[0]))
    a(f"v_mov_b32 v{T1}, v{MX}")
    a("s_nop 1")
    a(f"v_permlane32_swap_b32 v{T1}, v{MX}")
    a("s_nop 1")
    a(f"v_max_f32 v{MX}, v{MX}, v{T1}")
    for i in range(16): a(f"v_sub_f32 v{SB[0]+i}, v{SB[0]+i}, v{MX}")
    for i in range(16): a(f"v_sub_f32 v{NEGM+i}, 0, v{MX}")

def attention_loop(a):
    A = cfg.ahead
    assert A <= 5
    W = 2*(A-2)
    a("s_setprio 2")
    a(f"s_mov_b32 s{S_CNT}, 8")
    a.raw(".p2align 3")
    a.label("L_loop")
    for j in range(3): body(a, j, [18 + 2*j + A, 19 + 2*j + A], W)
    a(f"s_cmp_eq_u32 s{S_CNT}, 1"); a("s_cbranch_scc1 L_last")
    body(a, 3, [24 + A, 25 + A], W)
    a(f"s_sub_u32 s{S_CNT}, s{S_CNT}, 1"); a("s_branch L_loop")
    a.label("L_last")
    body(a, 3, [24 + A, 25 + A], W, do_qk=False)

def o_pack(a, dst, after_db=None):
    a(f"v_mov_b32 v{T1}, v{LSUM}")
    a("s_nop 1")
    a(f"v_permlane32_swap_b32 v{T1}, v{LSUM}")
    a("s_nop 1")
    a(f"v_add_f32 v{LSUM}, v{LSUM}, v{T1}")
    a(f"v_rcp_f32 v{T2}, v{LSUM}")
    a(f"s_movk_i32 s{S_T0}, 4096")
    a("s_nop 2")
    for db in range(4):
        for i in range(16): a(f"v_mul_f32 v{OACC+16*db+i}, v{OACC+16*db+i}, v{T2}")
        for i in range(8): a(f"v_cvt_pk_bf16_f32 v{dst+8*db+i}, v{OACC+16*db+2*i}, v{OACC+16*db+2*i+1}")
        for sp in range(2):
            ks = 2*db + sp
            so = "0" if ks < 4 else f"s{S_T0}"
            a.vmem(f"buffer_store_dwordx4 {vr(dst+4*ks,4)}, v{VOST}, {sr(S_O,4)}, {so} offen offset:{(ks%4)*1024} sc1", "ost")
        if after_db: after_db(db)

def build_dbg_srd(a):
    d = S_D
    a(f"s_mov_b32 s{d}, s26"); a(f"s_mov_b32 s{d+1}, s27"); a(f"s_mov_b32 s{d+2}, 256"); a(f"s_mov_b32 s{d+3}, 0x20000")
def claim_a(a):
    a(f"s_mov_b32 s{S_T0}, {EP_OFF}")
    a(f"buffer_load_dword v{VFL}, v{VZ}, {sr(S_F,4)}, s{S_T0} offen sc1")
def claim_b(a):
    a(f"v_readfirstlane_b32 s{S_N0}, v{VFL}")
    a("s_nop 0")
    a(f"s_add_u32 s{S_N0}, s{S_N0}, 1")
    a(f"s_max_u32 s{S_N0}, s{S_N0}, 1")
    a(f"v_mov_b32 v{VFL}, s{S_N0}"); a(f"v_mov_b32 v{VFL+1}, 0")
    a("s_mov_b64 exec, 1")
    a(f"buffer_atomic_cmpswap {vr(VFL,2)}, v{VZ}, {sr(S_D,4)}, 0 offen sc0 sc1")
    a("s_mov_b64 exec, -1")
def claim_c(a, tag):
    a(f"v_readfirstlane_b32 s{S_T1}, v{VFL}")
    a("s_nop 0")
    a(f"s_cmp_eq_u32 s{S_T1}, 0")
    a(f"s_cbranch_scc0 L_lost{tag}")
    a(f"v_mov_b32 v{VFL}, s{S_N0}")
    a(f"s_mov_b32 s{S_T0}, {EP_OFF}")
    a("s_mov_b64 exec, 1")
    a(f"buffer_store_dword v{VFL}, v{VZ}, {sr(S_F,4)}, s{S_T0} offen sc1")
    a("s_mov_b64 exec, -1")
    a(f"s_branch L_got{tag}")
    a.label(f"L_lost{tag}")
    a(f"s_mov_b32 s{S_N0}, s{S_T1}")
    a.label(f"L_got{tag}")
def nonce_load(a):
    a.vmem(f"buffer_load_dword v{VNON}, v{VZ}, {sr(S_D,4)}, 0 offen sc1", "non")
def get_nonce(a, tag):
    a(f"v_readfirstlane_b32 s{S_N0}, v{VNON}")
    a("s_nop 0")
    a(f"s_cmp_lg_u32 s{S_N0}, 0")
    a(f"s_cbranch_scc1 L_havenonce{tag}")
    claim_a(a); a("s_waitcnt vmcnt(0)"); claim_b(a); a("s_waitcnt vmcnt(0)"); claim_c(a, tag)
    a.label(f"L_havenonce{tag}")
    a(f"s_xor_b32 s{S_N1}, s{S_N0}, {TAGX}")
    a(f"v_mov_b32 v{VFL}, s{S_N0}"); a(f"v_mov_b32 v{VFL+1}, s{S_N1}")
def flag_store(a, soff):
    a("s_mov_b64 exec, 1")
    a.vmem(f"buffer_store_dwordx2 {vr(VFL,2)}, v{VZ}, {sr(S_F,4)}, s{soff} offen sc1", "flag")
    a("s_mov_b64 exec, -1")
def poll_issue(a, soff, vaddr):
    a.vmem(f"buffer_load_dwordx2 {vr(T2,2)}, v{vaddr}, {sr(S_F,4)}, s{soff} offen sc1", "poll")
def poll_check(a, done_label):
    a(f"v_cmp_ne_u32 vcc, s{S_N0}, v{T2}")
    a(f"v_cmp_ne_u32 s[4:5], s{S_N1}, v{T3}")
    a("s_or_b64 vcc, vcc, s[4:5]")
    a(f"s_cbranch_scc0 {done_label}")
def poll(a, tag, soff, vaddr):
    a(f"s_mov_b32 s{S_T1}, 0x200000")
    a.label(f"L_poll{tag}")
    a(f"buffer_load_dwordx2 {vr(T2,2)}, v{vaddr}, {sr(S_F,4)}, s{soff} offen sc1")
    a("s_waitcnt vmcnt(0)")
    poll_check(a, f"L_polld{tag}")
    a(f"s_sleep {cfg.slp}")
    a(f"s_sub_u32 s{S_T1}, s{S_T1}, 1")
    a(f"s_cmp_lg_u32 s{S_T1}, 0")
    a(f"s_cbranch_scc1 L_poll{tag}")
    a("s_branch L_end")
    a.label(f"L_polld{tag}")

def tick(a, tags=()):
    a.vm_wait(tags, also_lgkm0=True)
    a("s_barrier")
    trace(a)

S_WO = S_W
def wo_setup(a):
    a(f"s_lshl_b32 s{S_T0}, s{S_NB}, 8"); srd(a, S_WO, 12, S_T0, 0); a(f"s_sub_u32 s{S_WO+2}, {4096*1024}, s{S_T0}")
    a(f"v_lshrrev_b32 v{VOW}, 4, v{LANE}")
    a(f"v_mul_u32_u24 v{VOW}, 768, v{VOW}")
    a(f"v_add_u32 v{VOW}, v{VOV}, v{VOW}")
    a(f"s_lshl_b32 s{S_T0}, s{S_WV}, 13")
    a(f"v_add_u32 v{VOW}, s{S_T0}, v{VOW}")
def headoff(a, pos, phase, dst, sh):
    a(f"s_add_u32 s{dst}, s{S_NB}, {pos}"); a(f"s_and_b32 s{dst}, s{dst}, 3"); a(f"s_lshl_b32 s{dst}, s{dst}, 1")
    a(f"s_lshl_b32 s{S_T1}, s{S_XQ}, 3"); a(f"s_add_u32 s{dst}, s{dst}, s{S_T1}")
    if phase: a(f"s_add_u32 s{dst}, s{dst}, 1")
    a(f"s_lshl_b32 s{dst}, s{dst}, {sh}")
def wo_lds(g):
    if g < 28: return WB + (g % 12) * 8192
    return (g - 28) * 8192
def wo_issue(a, g):
    headoff(a, (g >> 2) & 3, g >> 4, S_T2, 17)
    for k in range(2):
        a(f"s_add_u32 m0, s{S_W2K}, {wo_lds(g) + k*1024}")
        a(f"s_add_u32 s{S_T0}, s{S_T2}, {(32*(g&3) + k*4)*1024}")
        a.vmem(f"buffer_load_dwordx4 v{VOW}, {sr(S_WO,4)}, s{S_T0} offen lds", ("wo", g))
def wo_reads(a, g, base):
    ad = wo_lds(g)
    if ad < 65536: return trreads(a, VA, ad, base, 8)
    if ad < 131072: return trreads(a, VB1, ad - 65536, base, 8)
    return trreads(a, VB2, ad - 131072, base, 8)

def g1_aux_r1(a):
    A = cfg.ahead
    a("s_setprio 0")
    build_dbg_srd(a)
    a(f"s_add_u32 s{S_W}, s{S_W}, 256"); a(f"s_addc_u32 s{S_W+1}, s{S_W+1}, 0"); a(f"s_sub_u32 s{S_W+2}, s{S_W+2}, 256")
    def w2(v):
        if (v & 1) == 0: kc(a, v >> 1, S_T2, 19)
        for k in range(2):
            a(f"s_add_u32 m0, s{S_WB}, {(v%6)*8192 + k*1024}")
            a(f"s_add_u32 s{S_T0}, s{S_T2}, {((v&1)*32 + k*4)*8192}")
            a.vmem(f"buffer_load_dwordx4 v{VOW}, {sr(S_W,4)}, s{S_T0} offen lds", ("w2", v))
    LA = 3
    def claimer(part, t):
        a(f"s_cmp_eq_u32 s{S_CL}, 0"); a(f"s_cbranch_scc0 L_nc{t}"); part(); a.label(f"L_nc{t}")
    for t in range(32):
        a.c(f"G1 tick {t}")
        tags = [n for n in range(16, 20 + 2*t)]
        v = t - LA
        if 0 <= v < 16: tags.append(("w2", v))
        if t == 31: tags += [("wo", g) for g in range(12)] + ["non"]
        tick(a, tags)
        if t < 16: w2(t)
        if t == 0: claimer(lambda: claim_a(a), t)
        if t == 4: claimer(lambda: claim_b(a), t)
        if t == 8: claimer(lambda: claim_c(a, "e"), t)
        if 0 <= v < 16 and not cfg.x_noq2:
            run(trreads(a, WA, (v % 6) * 8192, VF, 4))
            run(acc_mfmas(a, VF, XR + 8*v, first=(v == 0)))
        if t == 16 + LA:
            a("s_nop 7"); a("s_nop 1")
            scale_pack_q(a)
            wo_setup(a)
        if 16 + LA <= t < 28 and t - 16 - LA < 12:
            i = t - 16 - LA
            gs = [i] if i < 6 else [6 + 2*(i-6), 7 + 2*(i-6)]
            for g in gs: wo_issue(a, g)
        if t == 28: nonce_load(a)
        if t == 30:
            for s in range(8): kread(a, 79 % 8, s)()
        if t == 31:
            get_nonce(a, "g")
    set_kv_pos(a, 18 + 64 + A)

def g0_aux_r2(a):
    A = cfg.ahead
    S_OO = S_K; VPOLL = 12
    last = 17 + 64 + A
    a.vm = []
    for n in range(last - A + 1, last + 1): a.vm += [n, n]
    a("s_setprio 0")
    TP = cfg.t_poll
    def oload(pos, k, buf, phase):
        if k % 2 == 0:
            headoff(a, pos, phase, S_THR, 13)
            if k >= 4: a(f"s_add_u32 s{S_THR}, s{S_THR}, 4096")
        a.vmem(f"buffer_load_dwordx4 {vr(OB[buf]+4*k,4)}, v{VOST}, {sr(S_OO,4)}, s{S_THR} offen offset:{(k%4)*1024} sc1", ("o", phase, pos, k >> 1))
    buf_of = [0, 1, 2, 0]
    hs_tick = {}
    for g in range(4): hs_tick[33 + g] = g
    for g in range(4, 16): hs_tick[TP + 3 + (g - 4)] = g
    refill = {}
    for g in range(12, 16): refill[34 + (g - 12)] = g
    for g in range(16, 28): refill[50 + (g - 16)] = g
    assert TP + 3 + 11 <= 62 and all(refill_t > [t for t, h in hs_tick.items() if h == g - 12][0] for refill_t, g in refill.items())
    for t in range(32, 64):
        a.c(f"G0 tick {t}")
        tags = [n for n in range(16, 20 + 2*t)]
        g = hs_tick.get(t)
        if g is not None:
            tags.append(("wo", g))
            if g >= 4: tags.append(("o", 0, g >> 2, g & 3))
        if t == 35: tags += ["ost", "non"]
        if t == TP: tags.append("poll")
        tick(a, tags)
        if t == 32:
            build_dbg_srd(a)
            nonce_load(a)
            o_pack(a, OB[0])
            wo_setup(a)
            a(f"s_lshl_b32 s{S_T0}, s{S_XQ}, 6")
            for d in range(4): a(f"v_xor_b32 v{VA+d}, s{S_T0}, v{VA+d}")
            for d in range(4): a(f"v_add_u32 v{VB1+d}, 0x10000, v{VA+d}"); a(f"v_add_u32 v{VB2+d}, 0x20000, v{VA+d}")
            a(f"v_and_b32 v{VPOLL}, 3, v{LANE}"); a(f"v_lshlrev_b32 v{VPOLL}, 3, v{VPOLL}")
            a(f"s_add_u32 s{S_T0}, s{S_GID}, s{S_WV}"); a(f"s_lshl_b32 s{S_T0}, s{S_T0}, 18"); srd(a, S_OO, 28, S_T0, 32*8192)
        if t == 35:
            get_nonce(a, "h")
            flag_store(a, S_FOFF)
        if t == TP - 2: poll_issue(a, S_POFF, VPOLL)
        if t == TP:
            poll_check(a, "L_polldo1")
            poll(a, "o1", S_POFF, VPOLL)
            stamp(a, 7)
        if t in refill: wo_issue(a, refill[t])
        if TP <= t < TP + 12:
            i = t - TP; pos = 1 + i // 4; k = 2 * (i % 4)
            oload(pos, k, buf_of[pos], 0); oload(pos, k + 1, buf_of[pos], 0)
        if g is not None and not cfg.x_noph1:
            run(wo_reads(a, g, VF))
            run(acc_mfmas(a, VF, OB[buf_of[g >> 2]] + 8*(g & 3), first=(g == 0)))
    a("s_setprio 2")
    AB = [VF, KF]
    a(f"s_add_u32 s{S_POFF}, s{S_POFF}, 128")
    a(f"v_add_u32 v{T1}, s{S_W2K}, v{VOST}")
    a("s_waitcnt vmcnt(0)"); a.vm = []
    a("s_barrier")
    stamp(a, 8)
    for k in range(8): a.ds(f"ds_read_b128 {vr(OB[0]+4*k,4)}, v{T1} offset:{(4 + (k>>1))*8192 + (k&1)*1024}", rng(OB[0]+4*k, 4))
    run(wo_reads(a, 16, AB[0]))
    for g in range(28, 32): wo_issue(a, g)
    def hs(g, extra=()):
        nxt = wo_reads(a, g + 1, AB[(g + 1) & 1]) if g < 31 else []
        lists = ([(nxt, 0, 6)] if nxt else []) + ([(list(extra), 0, 8)] if extra else [])
        interleave(a, acc_mfmas(a, AB[g & 1], OB[buf_of[(g >> 2) & 3]] + 8*(g & 3), bneed=True), spread(8, *lists))
    for g in range(16, 20): hs(g)
    poll(a, "o2", S_POFF, VPOLL); a.vm = []
    stamp(a, 9)
    for pos in range(1, 4):
        for k in range(8): oload(pos, k, buf_of[pos], 1)
    for g in range(20, 32):
        a.vm_wait([("o", 1, (g >> 2) & 3, g & 3)])
        if g == 27: a("s_barrier")
        hs(g)
    stamp(a, 3)
    S_P = S_V; S_OUT = S_O; VOUT = 13
    a(f"s_add_u32 s{S_T2}, s{S_GID}, s{S_NB}")
    a(f"s_lshl_b32 s{S_T0}, s{S_T2}, 17"); a(f"s_add_u32 s{S_T0}, s{S_T0}, {WS_P}"); srd(a, S_P, 28, S_T0, 131072)
    a(f"s_lshl_b32 s{S_SC}, s{S_XQ}, 13"); a(f"s_add_u32 s{S_SC}, s{S_SC}, s{S_W2K}")
    PK = 184
    a("s_nop 3")
    for d in range(1, 4):
        for i in range(8): a(f"v_cvt_pk_bf16_f32 v{PK+8*d+i}, v{OACC+16*d+2*i}, v{OACC+16*d+2*i+1}")
        a(f"s_xor_b32 s{S_T0}, s{S_XQ}, {d}"); a(f"s_lshl_b32 s{S_T0}, s{S_T0}, 15"); a(f"s_add_u32 s{S_T0}, s{S_T0}, s{S_SC}")
        for k in range(2): a(f"buffer_store_dwordx4 {vr(PK+8*d+4*k,4)}, v{VOST}, {sr(S_P,4)}, s{S_T0} offen offset:{k*1024} sc1")
    a(f"s_lshl_b32 s{S_T3}, s{S_T2}, 7"); a(f"s_lshl_b32 s{S_T0}, s{S_WV}, 5"); a(f"s_add_u32 s{S_T3}, s{S_T3}, s{S_T0}"); a(f"s_add_u32 s{S_T3}, s{S_T3}, {FP_OFF}")
    a(f"s_lshl_b32 s{S_T2}, s{S_XQ}, 3"); a(f"s_add_u32 s{S_T2}, s{S_T2}, s{S_T3}")
    a(f"s_lshl_b32 s{S_T1}, s{S_B}, 2"); a(f"s_add_u32 s{S_T1}, s{S_T1}, s{S_WV}"); a(f"s_lshl_b32 s{S_T1}, s{S_T1}, 16")
    a(f"s_lshl_b32 s{S_THR}, s{S_BR}, 10"); a(f"s_add_u32 s{S_T1}, s{S_T1}, s{S_THR}")
    a(f"s_lshl_b32 s{S_THR}, s{S_NB}, 8"); a(f"s_add_u32 s{S_T1}, s{S_T1}, s{S_THR}")
    a(f"s_lshl_b32 s{S_THR}, s{S_XQ}, 6"); a(f"s_add_u32 s{S_T1}, s{S_T1}, s{S_THR}")
    srd(a, S_OUT, 24, S_T1, 0); a(f"s_sub_u32 s{S_OUT+2}, {8*128*2048}, s{S_T1}")
    a(f"v_and_b32 v{T1}, 31, v{LANE}"); a(f"v_lshlrev_b32 v{VOUT}, 11, v{T1}")
    a(f"v_lshrrev_b32 v{T1}, 5, v{LANE}"); a(f"v_lshl_add_u32 v{VOUT}, v{T1}, 4, v{VOUT}")
    a("s_waitcnt vmcnt(0)")
    flag_store(a, S_T2)
    poll(a, "p", S_T3, VPOLL)
    stamp(a, 4)
    a(f"s_lshl_b32 s{S_SC}, s{S_XQ}, 15"); a(f"s_add_u32 s{S_SC}, s{S_SC}, s{S_W2K}")
    for d in range(1, 4):
        a(f"s_xor_b32 s{S_T0}, s{S_XQ}, {d}"); a(f"s_lshl_b32 s{S_T0}, s{S_T0}, 13"); a(f"s_add_u32 s{S_T0}, s{S_T0}, s{S_SC}")
        for k in range(2): a(f"buffer_load_dwordx4 {vr(PK+8*d+4*k,4)}, v{VOST}, {sr(S_P,4)}, s{S_T0} offen offset:{k*1024} sc1")
    for d in range(1, 4):
        a(f"s_waitcnt vmcnt({2*(3-d)})")
        for i in range(8):
            a(f"v_lshlrev_b32 v{T1}, 16, v{PK+8*d+i}")
            a(f"v_and_b32 v{T2}, 0xffff0000, v{PK+8*d+i}")
            a(f"v_add_f32 v{OACC+2*i}, v{OACC+2*i}, v{T1}")
            a(f"v_add_f32 v{OACC+2*i+1}, v{OACC+2*i+1}, v{T2}")
    for i in range(8): a(f"v_cvt_pk_bf16_f32 v{PK+i}, v{OACC+2*i}, v{OACC+2*i+1}")
    a("s_nop 1")
    a(f"v_permlane32_swap_b32 v{PK}, v{PK+2}"); a(f"v_permlane32_swap_b32 v{PK+1}, v{PK+3}")
    a(f"v_permlane32_swap_b32 v{PK+4}, v{PK+6}"); a(f"v_permlane32_swap_b32 v{PK+5}, v{PK+7}")
    a("s_nop 1")
    a(f"buffer_store_dwordx4 {vr(PK,4)}, v{VOUT}, {sr(S_OUT,4)}, 0 offen")
    a(f"buffer_store_dwordx4 {vr(PK+4,4)}, v{VOUT}, {sr(S_OUT,4)}, 0 offen offset:32")

def g1_finish(a):
    a("s_waitcnt vmcnt(0)")
    a(f"v_add_u32 v{T3}, s{S_W2K}, v{VOST}")
    def after(db):
        for sp in range(2): a(f"ds_write_b128 v{T3}, {vr(QF+8*db+4*sp,4)} offset:{(4+db)*8192 + sp*1024}")
    o_pack(a, QF, after)
    a("s_waitcnt lgkmcnt(0)")
    a("s_barrier")
    a(f"s_add_u32 s{S_FOFF}, s{S_FOFF}, 128")
    a("s_waitcnt vmcnt(0)")
    flag_store(a, S_FOFF)

def gen_kernel(a):
    name = KN + "_kernel"
    A = cfg.ahead
    a.raw(".p2align 8"); a.raw(f".type {name},@function"); a.label(name)
    a("s_cmp_ge_u32 s2, 256"); a("s_cbranch_scc1 L_end")
    if cfg.x_cal: a("s_memrealtime s[90:91]")
    a("s_load_dwordx16 s[4:19], s[0:1], 0")
    a("s_load_dwordx4 s[20:23], s[0:1], 64")
    a("s_load_dwordx4 s[24:27], s[0:1], 80")
    a("s_load_dwordx2 s[28:29], s[0:1], 96")
    a(f"v_lshrrev_b32 v{U1}, 6, v0")
    a(f"v_and_b32 v{LANE}, 63, v0")
    a(f"v_readfirstlane_b32 s{S_WV}, v{U1}")
    a(f"s_bfe_u32 s{S_BR}, s2, 0x10002")
    a(f"s_and_b32 s{S_XQ}, s2, 3")
    a(f"s_bfe_u32 s{S_NB}, s2, 0x20003")
    a(f"s_bfe_u32 s{S_B}, s2, 0x30005")
    a(f"s_lshr_b32 s{S_GRP}, s{S_WV}, 2"); a(f"s_and_b32 s{S_WV}, s{S_WV}, 3")
    a(f"s_lshl_b32 s{S_H}, s{S_XQ}, 2"); a(f"s_add_u32 s{S_H}, s{S_H}, s{S_NB}"); a(f"s_lshl_b32 s{S_H}, s{S_H}, 1")
    if cfg.rot:
        a(f"s_lshl_b32 s{S_ROT}, s{S_NB}, 1"); a(f"s_add_u32 s{S_ROT}, s{S_ROT}, s{S_B}")
    else:
        a(f"s_mov_b32 s{S_ROT}, 0")
    a(f"s_lshl_b32 s{S_W2K}, s{S_WV}, 11")
    a(f"s_lshl_b32 s{S_XB}, s{S_WV}, 12"); a(f"s_add_u32 s{S_XB}, s{S_XB}, {XB}")
    setup_dma_addrs(a)
    a("s_waitcnt lgkmcnt(0)")
    zero_stamps(a); stamp(a, 0); cstamp(a, 10)
    a(f"s_cmp_eq_u32 s{S_BR}, 0")
    for i in range(5): a(f"s_cselect_b64 {sr(4+2*i,2)}, {sr(4+2*i,2)}, {sr(14+2*i,2)}")
    a(f"s_lshl_b32 s{S_T0}, s{S_B}, 17"); srd(a, S_X, 4, S_T0, 131072)
    a(f"s_lshl_b32 s{S_T0}, s{S_H}, 8"); srd(a, S_W, 10, S_T0, 0)
    a(f"s_sub_u32 s{S_W+2}, {512*8192}, s{S_T0}")
    a(f"s_add_u32 s{S_WB}, s{S_W2K}, {WB}")
    def rest_scalars():
        a(f"s_lshl_b32 s{S_T0}, s{S_B}, 5"); a(f"s_add_u32 s{S_T0}, s{S_T0}, s{S_H}"); a(f"s_lshl_b32 s{S_T0}, s{S_T0}, 18")
        srd(a, S_K, 6, S_T0, 524288); srd(a, S_V, 8, S_T0, 524288)
        a(f"s_lshl_b32 s{S_GID}, s{S_BR}, 3"); a(f"s_add_u32 s{S_GID}, s{S_GID}, s{S_B}"); a(f"s_lshl_b32 s{S_GID}, s{S_GID}, 2")
        a(f"s_add_u32 s{S_T0}, s{S_GID}, s{S_WV}"); a(f"s_lshl_b32 s{S_T0}, s{S_T0}, 5"); a(f"s_add_u32 s{S_T0}, s{S_T0}, s{S_H}")
        a(f"s_add_u32 s{S_T0}, s{S_T0}, s{S_GRP}"); a(f"s_lshl_b32 s{S_T0}, s{S_T0}, 13")
        srd(a, S_O, 28, S_T0, 8192)
        a(f"s_add_u32 s{S_F}, s28, {WS_F}"); a(f"s_addc_u32 s{S_F+1}, s29, 0"); a(f"s_mov_b32 s{S_F+2}, {F_BYTES}"); a(f"s_mov_b32 s{S_F+3}, 0x20000")
        a(f"s_add_u32 s{S_POFF}, s{S_GID}, s{S_XQ}"); a(f"s_lshl_b32 s{S_POFF}, s{S_POFF}, 3"); a(f"s_add_u32 s{S_POFF}, s{S_POFF}, s{S_WV}"); a(f"s_lshl_b32 s{S_POFF}, s{S_POFF}, 5")
        a(f"s_lshl_b32 s{S_FOFF}, s{S_NB}, 3"); a(f"s_add_u32 s{S_FOFF}, s{S_FOFF}, s{S_POFF}")
        a(f"s_lshl_b32 s{S_CL}, s2, 2"); a(f"s_add_u32 s{S_CL}, s{S_CL}, s{S_WV}")
        a(f"s_mov_b32 s{S_THR}, 0x41000000")
        sc = math.log2(math.e) / math.sqrt(128.0)
        a(f"s_mov_b32 s{S_SC}, 0x{struct.unpack('<I', struct.pack('<f', sc))[0]:08x}")
        if cfg.stamp: a(f"s_mov_b32 s{S_TRI}, 0")
    rest_scalars()
    a(f"s_cmp_lg_u32 s{S_GRP}, 0"); a("s_cbranch_scc1 L_g1")
    setup_rest(a)
    set_kv_pos(a, 18 + A)
    p0_compute(a)
    a("s_nop 7"); a("s_nop 3")
    scale_pack_q(a)
    a("s_barrier")
    for s in range(8): kread(a, 0, s)()
    a("s_branch L_att")
    a.label("L_g1")
    a.lds = []; a.vm = []
    a("s_setprio 3")
    set_kv_pos(a, 16)
    p0_loader(a)
    g1_aux_r1(a)
    a.lds = [set(rng(KF+4*s, 4)) for s in range(8)]
    a.label("L_att")
    head_prologue(a)
    stamp(a, 5); cstamp(a, 11)
    attention_loop(a)
    stamp(a, 6)
    a(f"s_cmp_lg_u32 s{S_GRP}, 0"); a("s_cbranch_scc1 L_g1fin")
    g0_aux_r2(a)
    if cfg.x_cal:
        a("s_waitcnt vmcnt(0)")
        a.label("L_cal"); a("s_memrealtime s[88:89]"); a("s_waitcnt lgkmcnt(0)"); a("s_sub_u32 s88, s88, s90")
        a(f"s_cmp_lt_u32 s88, {cfg.x_cal}"); a("s_cbranch_scc1 L_cal")
    a("s_branch L_fin")
    a.label("L_g1fin")
    g1_finish(a)
    a.label("L_fin")
    dump_stamps(a)
    a.label("L_end")
    a("s_endpgm")
    for rid, sb in rare_blocks: rare(a, rid, sb)

def gen(**kw):
    for k, v in kw.items(): setattr(cfg, k, v)
    rare_id[0] = 0; rare_blocks.clear()
    a = Asm()
    name = KN + "_kernel"
    a.raw("; @launch grid=(256,1,1) block=(512,1,1) lds=163840")
    a.raw('.amdgcn_target "amdgcn-amd-amdhsa--gfx950"'); a.raw(".text")
    a.raw(f".globl {name}")
    gen_kernel(a)
    a.raw('.section .rodata,"a"'); a.raw(".p2align 6")
    a.raw(f".amdhsa_kernel {name}")
    for d in ["next_free_vgpr 256", "next_free_sgpr 102", "accum_offset 256", "group_segment_fixed_size 0", "kernarg_size 104",
              "user_sgpr_count 2", "user_sgpr_kernarg_segment_ptr 1", "system_sgpr_workgroup_id_x 1"]:
        a.raw("  .amdhsa_" + d)
    a.raw(".end_amdhsa_kernel")
    return a.text()

if __name__ == "__main__":
    open(f"cdna_kernels/{KN}.s", "w").write(gen())
    open("cal150.s", "w").write(gen(x_cal=15000))
    open("cal100.s", "w").write(gen(x_cal=10000))
    cfg.x_cal = 0
    open("k6_a5.s", "w").write(gen(stamp=True, ahead=5))
    open("k6_noq2.s", "w").write(gen(stamp=True, ahead=5, x_noq2=True, x_noph1=True))
    open("k6_nopv.s", "w").write(gen(stamp=True, ahead=5, x_noq2=False, x_noph1=False, x_nopv=True))
```

```python
import sys, math, struct
sys.path.insert(0, "gen")
from emit import *
KN = "concat_heads__mha_block_cached__gqa_block_cached__near_ridge"

class Cfg:
    nt_kv = True
    stamp = False
    ahead = 4
    rot = True
    slp = 2
    t_pub = 62
    t_poll = 61
    touch = True
    x_cal = 0
    x_p0slow = 0
    x_noq2 = False
    pk_o = False
    pk_q = False
    mov64 = False
    warm = 1
    tagp = True
    rotm = 4
    local = True
    ofl = " sc1"
    fsh = 7
    opad = 0
    x_now3 = False
    st_n = 1
    q2_t0 = 3
    dma_pos = 3
cfg = Cfg()

MFMA = "v_mfma_f32_16x16x32_bf16"
KA = 0; VA = 4
VOK0, VOK1, VOV0, VOV1 = 12, 13, 14, 15
LS = 16; MX = 18; T1 = 19; T2 = 20; T3 = 21
XRA = 16; VOX0 = 20; VOX1 = 21
LANE = 22; VOST = 23
VF = 24; OACC = 56; QF = 120; KF = 152
SB = [184, 200]; NEGM = 216; PB = 232
XF = [184, 200]
XR = 120
VOW0 = 248; VOW1 = 249; VNON = 250; T4 = 251
VFL = 252; VZ = 254; VTR = 255
OB = [120, 184, 216]
S_K, S_V, S_X, S_W, S_O = 32, 36, 40, 44, 48
S_WV, S_BR, S_H, S_B, S_W2K, S_OFFK, S_OFFV, S_CNT, S_T0, S_THR, S_SC, S_T1 = 52, 53, 54, 55, 56, 57, 58, 59, 60, 61, 62, 63
S_ROT, S_T2, S_T3 = 30, 31, 3
S_GRP, S_XQ, S_NB = 96, 97, 98
S_N0, S_N1 = 99, 100
S_XB = 101
S_F = 16
S_FOFF = 20; S_TRI = 22; S_GID = 21; S_CL = 14; S_WB = 15; S_POFF = 23
S_D = S_X
S_MODE = 6; S_IOFF = 7
WS_P = 0x1000000
WS_F = 0x3000000
WS_O = 0x4000000
FO_BYTES = 64 * 32 * 128
FI_OFF = FO_BYTES
EP_OFF = FI_OFF + 64 * 4 * 128
F_BYTES = EP_OFF + 128
TAGX = 0x5bd1e995
WB = 65536
XB = WB + 49152

NST = 14
def stamp(a, k):
    if cfg.stamp: a(f"s_memrealtime {sr(64+2*k,2)}")
def cstamp(a, k):
    if cfg.stamp: a(f"s_memtime {sr(64+2*k,2)}")
trace_id = [0]
def trace(a):
    if cfg.stamp:
        a(f"s_mov_b32 m0, s{S_TRI}"); a("s_nop 0"); a(f"v_writelane_b32 v{VTR}, s92, m0"); a(f"s_add_u32 s{S_TRI}, s{S_TRI}, 1")
        trace_id[0] += 1
        a(f"s_cmp_eq_u32 s{S_WV}, 1"); a(f"s_cbranch_scc1 L_trc{trace_id[0]}"); a("s_memrealtime s[92:93]"); a(f"s_branch L_trd{trace_id[0]}")
        a.label(f"L_trc{trace_id[0]}"); a("s_memtime s[92:93]"); a.label(f"L_trd{trace_id[0]}")
def dump_stamps(a):
    if not cfg.stamp: return
    t0 = S_T0
    a("s_waitcnt vmcnt(0) lgkmcnt(0)")
    a(f"s_mov_b32 m0, s{S_TRI}"); a("s_nop 0"); a(f"v_writelane_b32 v{VTR}, s92, m0")
    stamp(a, NST-1); cstamp(a, 12)
    a(f"s_getreg_b32 s92, hwreg(HW_REG_XCC_ID)"); a(f"s_getreg_b32 s93, hwreg(HW_REG_HW_ID)")
    a("s_waitcnt lgkmcnt(0)")
    a(f"s_add_u32 s28, s28, 0x2000000"); a("s_addc_u32 s29, s29, 0"); a("s_mov_b32 s30, 0x100000"); a("s_mov_b32 s31, 0x20000")
    for k in range(NST): a(f"v_mov_b32 v{32+k}, s{64+2*k}")
    a("v_mov_b32 v46, s92"); a("v_mov_b32 v47, s93")
    a(f"s_lshl_b32 s{t0}, s{S_GRP}, 8"); a(f"s_add_u32 s{t0}, s{t0}, s2")
    a(f"s_lshl_b32 s{t0}, s{t0}, 2"); a(f"s_add_u32 s{t0}, s{t0}, s{S_WV}"); a(f"s_lshl_b32 s{t0}, s{t0}, 6"); a(f"v_mov_b32 v30, s{t0}")
    a(f"s_lshl_b32 s{t0}, s{t0}, 2"); a(f"s_add_u32 s{t0}, s{t0}, 0x40000"); a(f"v_lshlrev_b32 v31, 2, v{LANE}")
    a(f"buffer_store_dword v{VTR}, v31, s[28:31], s{t0} offen")
    a(f"v_cmp_eq_u32 vcc, 0, v{LANE}"); a("s_and_saveexec_b64 s[94:95], vcc")
    for k in range(4): a(f"buffer_store_dwordx4 v[{32+4*k}:{35+4*k}], v30, s[28:31], 0 offen offset:{16*k}")
def zero_stamps(a):
    if cfg.stamp:
        a("s_mov_b32 s92, 0"); a(f"v_mov_b32 v{VTR}, 0")
        for k in range(NST): a(f"s_mov_b64 {sr(64+2*k,2)}, 0")

def srd(a, d, plo, off_sgpr, nbytes):
    a(f"s_add_u32 s{d}, s{plo}, s{off_sgpr}")
    a(f"s_addc_u32 s{d+1}, s{plo+1}, 0")
    a(f"s_mov_b32 s{d+2}, {nbytes}")
    a(f"s_mov_b32 s{d+3}, 0x20000")
def interleave(a, mfmas, fillers):
    for i, m in enumerate(mfmas):
        m()
        if i < len(fillers):
            for f in fillers[i]: f()
def spread(nslots, *lists):
    out = [[] for _ in range(nslots)]
    for (lst, lo, hi) in lists:
        n = len(lst)
        for i, x in enumerate(lst):
            out[lo + (i * (hi - lo)) // n].append(x)
    return out
def run(ops):
    for o in ops: o()

def is_k(n): return (n < 18) or (n % 2 == 1)
def kv_index_before(n):
    ks = sum(1 for m in range(16, n) if is_k(m)); return ks, (n - 16) - ks
def dma_kv(a, n):
    slot = n % 8
    fl = " nt" if cfg.nt_kv else ""
    v0, v1, s, so = (VOK0, VOK1, S_K, S_OFFK) if is_k(n) else (VOV0, VOV1, S_V, S_OFFV)
    return [lambda: (a(f"s_add_u32 m0, s{S_W2K}, {slot*8192}"), a("s_nop 0"),
                     a.vmem(f"buffer_load_dwordx4 v{v0}, {sr(s,4)}, s{so} offen{fl} lds", n)),
            lambda: (a.vmem(f"buffer_load_dwordx4 v{v1}, {sr(s,4)}, s{so} offen offset:1024{fl} lds", n),
                     a(f"s_add_u32 s{so}, s{so}, 8192"))]
def set_kv_pos(a, n):
    k, v = kv_index_before(n)
    a(f"s_add_u32 s{S_OFFK}, s{S_W2K}, {k*8192}"); a(f"s_add_u32 s{S_OFFV}, s{S_W2K}, {v*8192}")

kf = lambda s, kb: KF + 8*s + 4*kb
def kreads(a, slot):
    return [lambda s=s, kb=kb: a.ds(f"ds_read_b128 {vr(kf(s,kb),4)}, v{KA+s} offset:{slot*8192 + kb*4096}", rng(kf(s,kb), 4)) for s in range(4) for kb in range(2)]
va_base = [0]
def set_va(a, base):
    d = base - va_base[0]
    if d:
        for i in range(8): a(f"v_add_u32 v{VA+i}, {d & 0xffffffff:#x}, v{VA+i}")
        va_base[0] = base
def trreads(a, addr, base):
    win = addr & ~0xffff
    ops = []
    for db in range(8):
        for p in range(2):
            r = base + 4*db + 2*p
            def op(r=r, db=db, p=p):
                set_va(a, win)
                a.ds(f"ds_read_b64_tr_b16 {vr(r,2)}, v{VA+db} offset:{addr - win + p*4096}", rng(r, 2))
            ops.append(op)
    return ops
def qk_mfmas(a, sbuf, negm):
    ms = []
    for s in range(4):
        for kb in range(2):
            for qb in range(2):
                def m(s=s, kb=kb, qb=qb):
                    a.need(rng(kf(s,kb), 4))
                    d = sbuf + 8*qb + 4*kb
                    c = (vr(NEGM + 4*qb, 4) if negm else "0") if s == 0 else vr(d, 4)
                    a(f"{MFMA} {vr(d,4)}, {vr(kf(s,kb),4)}, {vr(QF+16*qb+4*s,4)}, {c}")
                ms.append(m)
    return ms
def acc_mfmas(a, af, bf, first=False, bneed=False, qbs=(0, 1), qb_outer=True):
    order = [(qb, db) for qb in qbs for db in range(8)] if qb_outer else [(qb, db) for db in range(8) for qb in qbs]
    ms = []
    for qb, db in order:
        def m(qb=qb, db=db):
            f = af + 4*db
            a.need(list(rng(f, 4)) + (list(rng(bf+4*qb, 4)) if bneed else []))
            d = OACC + 32*qb + 4*db
            a(f"{MFMA} {vr(d,4)}, {vr(f,4)}, {vr(bf+4*qb,4)}, {'0' if first else vr(d,4)}")
        ms.append(m)
    return ms
def maxn(a, dst, sb, n):
    ops = [lambda: a(f"v_max3_f32 v{dst}, v{sb}, v{sb+1}, v{sb+2}")]
    for i in range(3, n-1, 2):
        ops.append(lambda i=i: a(f"v_max3_f32 v{dst}, v{dst}, v{sb+i}, v{sb+i+1}"))
    ops.append(lambda: a(f"v_max_f32 v{dst}, v{dst}, v{sb+n-1}"))
    return ops
def xreduce(a, x, t, op):
    for sw in ("v_permlane32_swap_b32", "v_permlane16_swap_b32"):
        a(f"v_mov_b32 v{t}, v{x}")
        a("s_nop 1")
        a(f"{sw} v{t}, v{x}")
        a("s_nop 1")
        a(f"{op} v{x}, v{x}, v{t}")

rare_id = [0]
rare_blocks = []
def body(a, j, dmas_n, vmwait, do_qk=True):
    cur = SB[j & 1]; nxt = SB[(j + 1) & 1]
    vslot = (18 + 2*j) % 8; kslot = (19 + 2*j) % 8
    a.c(f"---- body phase {j}")
    a(f"s_waitcnt vmcnt({vmwait}) lgkmcnt(0)"); a.lds = []
    a("s_barrier")
    trace(a)
    vreads = trreads(a, vslot*8192, VF)
    exps = [lambda i=i: a(f"v_exp_f32 v{cur+i}, v{cur+i}") for i in range(16)]
    cvts = [lambda i=i: a(f"v_cvt_pk_bf16_f32 v{PB+i}, v{cur+2*i}, v{cur+2*i+1}") for i in range(8)]
    adds = [lambda i=i: a(f"v_add_f32 v{LS+(i>>3)}, v{LS+(i>>3)}, v{cur+i}") for i in range(16)]
    dmas = []
    for n in dmas_n: dmas += dma_kv(a, n)
    if do_qk:
        dp = cfg.dma_pos
        f = spread(16, (dmas if dp < 2 else [], 8*(dp & 1), 8 + 8*(dp & 1)), (vreads, 0, 12), (exps, 0, 16))
        for i in range(4): f[4 + 3*i].append(cvts[i])
        interleave(a, qk_mfmas(a, nxt, True), f)
        f = spread(16, (dmas if dp >= 2 else [], 8*(dp & 1), 8 + 8*(dp & 1)), (kreads(a, kslot), 0, 8), (adds[:8], 0, 8), (maxn(a, MX, nxt, 16), 8, 16), (adds[8:], 8, 16))
        for i in range(4): f[1 + i].append(cvts[4+i])
        interleave(a, acc_mfmas(a, VF, PB), f)
        rid = rare_id[0]; rare_id[0] += 1
        a(f"v_cmp_lt_f32 vcc, s{S_THR}, v{MX}")
        a(f"s_cbranch_vccnz L_rare{rid}")
        a.label(f"L_back{rid}")
        rare_blocks.append((rid, nxt))
    else:
        run(vreads)
        a(f"s_cmp_lg_u32 s{S_GRP}, 0"); a("s_cbranch_scc1 L_nodma"); run(dmas); a.label("L_nodma")
        run(exps)
        a("s_nop 0")
        run(cvts)
        a("s_nop 1")
        interleave(a, acc_mfmas(a, VF, PB), spread(16, (adds, 0, 16)))

def rare(a, rid, sb):
    a.label(f"L_rare{rid}")
    for qb in range(2):
        run(maxn(a, MX, sb + 8*qb, 8))
        xreduce(a, MX, T1, "v_max_f32")
        a(f"v_max_f32 v{MX}, 0, v{MX}")
        a(f"v_exp_f32 v{T2}, -v{MX}")
        for i in range(4): a(f"v_sub_f32 v{NEGM+4*qb+i}, v{NEGM+4*qb+i}, v{MX}")
        for i in range(8): a(f"v_sub_f32 v{sb+8*qb+i}, v{sb+8*qb+i}, v{MX}")
        a(f"v_mul_f32 v{LS+qb}, v{LS+qb}, v{T2}")
        for i in range(32): a(f"v_mul_f32 v{OACC+32*qb+i}, v{OACC+32*qb+i}, v{T2}")
    a(f"s_branch L_back{rid}")

U1, U2, U3, U4 = 24, 25, 26, 27
def setup_dma_addrs(a):
    a(f"v_lshrrev_b32 v{U1}, 4, v{LANE}")
    a(f"v_and_b32 v{U2}, 15, v{LANE}")
    a(f"v_lshlrev_b32 v{U3}, 1, v{U1}")
    a(f"v_xor_b32 v{U3}, v{U3}, v{U2}")
    a(f"v_lshlrev_b32 v{U3}, 4, v{U3}")
    a(f"v_lshl_add_u32 v{VOV0}, v{U1}, 8, v{U3}")
    a(f"v_lshl_add_u32 v{VOW0}, v{U1}, 13, v{U3}")
    a(f"s_lshl_b32 s{S_T0}, s{S_WV}, 16")
    a(f"v_add_u32 v{VOW0}, s{S_T0}, v{VOW0}")
    a(f"v_xor_b32 v{VOW1}, 0x80, v{VOW0}")
    a(f"v_lshrrev_b32 v{U3}, 3, v{LANE}")
    a(f"v_and_b32 v{U4}, 7, v{LANE}")
    a(f"v_xor_b32 v{U4}, v{U4}, v{U1}")
    a(f"v_lshlrev_b32 v{VOX0}, 10, v{U3}")
    a(f"v_lshl_add_u32 v{VOX0}, v{U4}, 4, v{VOX0}")
    a(f"s_lshl_b32 s{S_T0}, s{S_WV}, 15")
    a(f"v_add_u32 v{VOX0}, s{S_T0}, v{VOX0}")
    a(f"v_xor_b32 v{VOX1}, 64, v{VOX0}")
def setup_rest(a):
    a(f"v_xor_b32 v{VOV1}, 0x80, v{VOV0}")
    a(f"s_and_b32 s{S_T0}, s{S_WV}, 1"); a(f"s_lshl_b32 s{S_T0}, s{S_T0}, 3")
    a(f"v_add_u32 v{U3}, s{S_T0}, v{U1}")
    a(f"v_xor_b32 v{VOK0}, v{U3}, v{U2}")
    a(f"v_xor_b32 v{VOK1}, 4, v{VOK0}")
    a(f"v_lshlrev_b32 v{VOK0}, 4, v{VOK0}"); a(f"v_lshlrev_b32 v{VOK1}, 4, v{VOK1}")
    a(f"v_lshl_add_u32 v{VOK0}, v{U1}, 8, v{VOK0}"); a(f"v_lshl_add_u32 v{VOK1}, v{U1}, 8, v{VOK1}")
    a(f"v_lshrrev_b32 v{U3}, 1, v{U2}")
    a(f"v_lshrrev_b32 v{U4}, 1, v{U1}")
    a(f"v_xor_b32 v{U3}, v{U3}, v{U4}")
    a(f"v_lshlrev_b32 v{U3}, 4, v{U3}")
    a(f"v_lshl_add_u32 v{XRA}, v{U2}, 7, v{U3}")
    a(f"v_and_b32 v{U4}, 1, v{U1}")
    a(f"v_lshl_add_u32 v{XRA}, v{U4}, 3, v{XRA}")
    a(f"v_add_u32 v{XRA}, s{S_XB}, v{XRA}")
    for i in range(1, 4): a(f"v_xor_b32 v{XRA+i}, {i<<5}, v{XRA}")
    a(f"v_xor_b32 v{KA}, v{U1}, v{U2}")
    a(f"v_lshlrev_b32 v{KA}, 4, v{KA}")
    a(f"v_lshl_add_u32 v{KA}, v{U2}, 8, v{KA}")
    for s in range(1, 4): a(f"v_xor_b32 v{KA+s}, {s<<6}, v{KA}")
    a(f"v_lshrrev_b32 v{U3}, 2, v{LANE}")
    a(f"v_and_b32 v{U4}, 7, v{U3}")
    a(f"v_lshlrev_b32 v{U4}, 5, v{U4}")
    a(f"v_lshl_add_u32 v{VA}, v{U3}, 8, v{U4}")
    a(f"v_and_b32 v{U3}, 3, v{LANE}")
    a(f"v_lshl_add_u32 v{VA}, v{U3}, 3, v{VA}")
    a(f"v_add_u32 v{VA}, {WB}, v{VA}")
    for db in range(1, 8): a(f"v_xor_b32 v{VA+db}, {db<<5}, v{VA}")
    va_base[0] = WB
    a(f"v_lshlrev_b32 v{VOST}, 4, v{LANE}")
    a(f"v_mov_b32 v{VZ}, 0")

def xreads(a, u, base):
    ops = []
    for sp in range(2):
        for qb in range(2):
            for p in range(2):
                r = base + 8*sp + 4*qb + 2*p
                ops.append(lambda r=r, sp=sp, qb=qb, p=p: a.ds(f"ds_read_b64 {vr(r,2)}, v{XRA+2*sp+p} offset:{(u%3)*16384 + qb*2048}", rng(r, 2)))
    return ops

def code_warm(a, tag, d, dst):
    name = KN + "_kernel"
    a(f"s_getpc_b64 {sr(d,2)}")
    a.label(f"L_pc{tag}")
    a(f"s_sub_u32 s{d}, s{d}, L_pc{tag}-{name}"); a(f"s_subb_u32 s{d+1}, s{d+1}, 0")
    a(f"s_mov_b32 s{d+2}, L_codeend-{name}"); a(f"s_mov_b32 s{d+3}, 0x20000")
    a(f"s_lshr_b32 s{S_T0}, s2, 3"); a(f"s_lshl_b32 s{S_T0}, s{S_T0}, 2"); a(f"s_add_u32 s{S_T0}, s{S_T0}, s{S_WV}"); a(f"s_lshl_b32 s{S_T0}, s{S_T0}, 10")
    a.vmem(f"buffer_load_dwordx4 {vr(dst,4)}, v{VOST}, {sr(d,4)}, s{S_T0} offen", "warm")

def p0_compute(a):
    AB = [VF, KF]
    waddr = lambda v: WB + ((v >> 1) % 3) * 16384 + (v & 1) * 8192
    wreads = lambda v: trreads(a, waddr(v), AB[v & 1])
    wm = lambda v: acc_mfmas(a, AB[v & 1], XF[(v >> 1) & 1] + 8*(v & 1), first=(v == 0), bneed=True, qb_outer=False)
    stamp(a, 1)
    a("s_barrier")
    stamp(a, 2)
    run(xreads(a, 0, XF[0])); run(wreads(0))
    for u in range(8):
        a.c(f"q1 step {u}")
        interleave(a, wm(2*u), spread(16, (wreads(2*u+1), 0, 10)))
        if cfg.x_p0slow: a(f"s_sleep {cfg.x_p0slow}")
        a.lgkm0()
        a("s_barrier")
        interleave(a, wm(2*u+1), spread(16, (xreads(a, u+1, XF[(u+1) & 1]), 0, 4), (wreads(2*u+2), 4, 14)) if u < 7 else [])

def kc(a, u, dst, sh):
    a(f"s_add_u32 s{dst}, s{S_ROT}, {u}"); a(f"s_and_b32 s{dst}, s{dst}, 7"); a(f"s_lshl_b32 s{dst}, s{dst}, {sh}")
def p0_loader(a):
    A = cfg.ahead
    def pair(u):
        kc(a, u, S_T3, 7)
        for i in range(4):
            a(f"s_add_u32 m0, s{S_XB}, {(u%3)*16384 + i*1024}")
            a(f"s_add_u32 s{S_T0}, s{S_T3}, {i*8192}")
            a.vmem(f"buffer_load_dwordx4 v{VOX1 if i & 1 else VOX0}, {sr(S_X,4)}, s{S_T0} offen lds", ("p", u))
        a(f"s_lshl_b32 s{S_T2}, s{S_T3}, 12")
        for i in range(4):
            half, k = i >> 1, i & 1
            a(f"s_add_u32 m0, s{S_WB}, {(u%3)*16384 + half*8192 + k*1024}")
            a(f"s_add_u32 s{S_T0}, s{S_T2}, {(half*32 + k*4)*8192}")
            a.vmem(f"buffer_load_dwordx4 v{VOW1 if k else VOW0}, {sr(S_W,4)}, s{S_T0} offen lds", ("p", u))
    pair(0); pair(1)
    setup_rest(a)
    stamp(a, 1)
    a.vm_wait([("p", 0)]); a("s_barrier")
    stamp(a, 2)
    run(xreads(a, 0, XR))
    pair(2)
    kvs = list(range(16, 18 + A))
    sched = {5: kvs[:3], 6: kvs[3:5], 7: kvs[5:]}
    for u in range(8):
        if u in (2, 5): stamp(a, {2: 3, 5: 4}[u])
        if u < 7: a.vm_wait([("p", u+1)], also_lgkm0=True)
        else: a.lgkm0()
        a("s_barrier")
        if u < 7: run(xreads(a, u+1, XR + 16*(u+1)))
        if u + 3 < 8: pair(u + 3)
        else:
            for n in sched[u]: run(dma_kv(a, n))
    stamp(a, 7)
    a.vm_wait([16, 17])
    stamp(a, 8)
    a("s_barrier")

def lane_fix(a, regs4):
    for r in regs4:
        a(f"v_permlane32_swap_b32 v{r}, v{r+2}"); a(f"v_permlane32_swap_b32 v{r+1}, v{r+3}")
    a("s_nop 1")
    for r in regs4:
        a(f"v_permlane16_swap_b32 v{r}, v{r+2}"); a(f"v_permlane16_swap_b32 v{r+1}, v{r+3}")
def scale_pack_q(a):
    for i0 in range(0, 64, 8):
        if cfg.pk_q:
            for i in range(i0, i0 + 8, 2): a(f"v_pk_mul_f32 {vr(OACC+i,2)}, {vr(OACC+i,2)}, {sr(S_SC,2)} op_sel_hi:[1,0]")
        else:
            for i in range(i0, i0 + 8): a(f"v_mul_f32 v{OACC+i}, s{S_SC}, v{OACC+i}")
        for i in range(i0, i0 + 8, 2): a(f"v_cvt_pk_bf16_f32 v{QF+i//2}, v{OACC+i}, v{OACC+i+1}")
    a("s_nop 1")
    lane_fix(a, [QF + 4*i for i in range(8)])
    a("s_nop 1")

def head_prologue(a):
    zs = [lambda i=i: a(f"v_mov_b64 {vr(OACC+i,2)}, 0") for i in range(0, 64, 2)] if cfg.mov64 else [lambda i=i: a(f"v_mov_b32 v{OACC+i}, 0") for i in range(64)]
    interleave(a, qk_mfmas(a, SB[0], False), spread(16, (zs, 0, 16)))
    a(f"v_mov_b32 v{LS}, 0"); a(f"v_mov_b32 v{LS+1}, 0")
    run(kreads(a, 1))
    for qb in range(2):
        run(maxn(a, MX, SB[0] + 8*qb, 8))
        xreduce(a, MX, T1, "v_max_f32")
        for i in range(8): a(f"v_sub_f32 v{SB[0]+8*qb+i}, v{SB[0]+8*qb+i}, v{MX}")
        for i in range(4): a(f"v_sub_f32 v{NEGM+4*qb+i}, 0, v{MX}")

def attention_loop(a):
    A = cfg.ahead
    assert A <= 5 and va_base[0] == 0
    W = 2*(A-2)
    a("s_setprio 2")
    a(f"s_mov_b32 s{S_CNT}, 8")
    a.raw(".p2align 3")
    a.label("L_loop")
    for j in range(3): body(a, j, [18 + 2*j + A, 19 + 2*j + A], W)
    a(f"s_cmp_eq_u32 s{S_CNT}, 1"); a("s_cbranch_scc1 L_last")
    body(a, 3, [24 + A, 25 + A], W)
    a(f"s_sub_u32 s{S_CNT}, s{S_CNT}, 1"); a("s_branch L_loop")
    a.label("L_last")
    body(a, 3, [24 + A, 25 + A], W, do_qk=False)

mode_id = [0]
def by_mode(a, emit):
    mode_id[0] += 1; i = mode_id[0]
    vm, n = list(a.vm), a.nvm
    a(f"s_cmp_eq_u32 s{S_MODE}, 0"); a(f"s_cbranch_scc1 L_far{i}")
    emit(""); a(f"s_branch L_near{i}")
    a.vm, a.nvm = vm, n
    a.label(f"L_far{i}"); emit(" sc1"); a.label(f"L_near{i}")
def o_stores(a, dst):
    def emit(fl):
        a(f"s_movk_i32 s{S_T0}, 4096")
        for f in range(8):
            so = "0" if f < 4 else f"s{S_T0}"
            a.vmem(f"buffer_store_dwordx4 {vr(dst+4*f,4)}, v{VOST}, {sr(S_O,4)}, {so} offen offset:{(f%4)*1024}{fl}", "ost")
    by_mode(a, emit)
def o_flag(a):
    a("s_mov_b64 exec, 1")
    by_mode(a, lambda fl: a.vmem(f"buffer_store_dwordx2 {vr(VFL,2)}, v{VZ}, {sr(S_F,4)}, s{S_FOFF} offen{fl}", "flag"))
    a("s_mov_b64 exec, -1")
def id_publish(a):
    a(f"s_getreg_b32 s{S_T1}, hwreg(HW_REG_XCC_ID, 0, 4)")
    a(f"s_add_u32 s{S_T1}, s{S_T1}, s{S_N1}")
    a(f"v_mov_b32 v{T2}, s{S_N0}"); a(f"v_mov_b32 v{T3}, s{S_T1}")
    a(f"s_lshl_b32 s{S_T0}, s{S_NB}, 7"); a(f"s_add_u32 s{S_T0}, s{S_T0}, s{S_IOFF}")
    a(f"s_cmp_eq_u32 s{S_WV}, 0"); a("s_cbranch_scc0 L_noid")
    a("s_mov_b64 exec, 1")
    a(f"buffer_store_dwordx2 {vr(T2,2)}, v{VZ}, {sr(S_F,4)}, s{S_T0} offen sc1")
    a("s_mov_b64 exec, -1")
    a.label("L_noid")
def id_load(a, vaddr):
    a(f"v_and_b32 v{vaddr}, 3, v{LANE}"); a(f"v_lshlrev_b32 v{vaddr}, 7, v{vaddr}")
    a.vmem(f"buffer_load_dwordx2 {vr(T2,2)}, v{vaddr}, {sr(S_F,4)}, s{S_IOFF} offen sc1", "id")
def id_check(a):
    a(f"s_getreg_b32 s{S_T1}, hwreg(HW_REG_XCC_ID, 0, 4)")
    a(f"s_add_u32 s{S_T1}, s{S_T1}, s{S_N1}")
    a(f"v_cmp_ne_u32 vcc, s{S_N0}, v{T2}")
    a(f"v_cmp_ne_u32 s[4:5], s{S_T1}, v{T3}")
    a("s_or_b64 vcc, vcc, s[4:5]")
    a(f"s_cselect_b32 s{S_MODE}, 0, {1 if cfg.local else 0}")
def o_pack(a, dst):
    xreduce(a, LS, T1, "v_add_f32"); xreduce(a, LS+1, T1, "v_add_f32")
    a(f"v_rcp_f32 v{LS}, v{LS}"); a(f"v_rcp_f32 v{LS+1}, v{LS+1}")
    a("s_nop 0")
    for ks in range(4):
        for qb in range(2):
            s = OACC + 32*qb + 8*ks; f = 2*ks + qb
            if cfg.pk_o:
                for i in range(0, 8, 2): a(f"v_pk_mul_f32 {vr(s+i,2)}, {vr(s+i,2)}, {vr(LS,2)} op_sel:[0,{qb}] op_sel_hi:[1,{qb}]")
            else:
                for i in range(8): a(f"v_mul_f32 v{s+i}, v{s+i}, v{LS+qb}")
            for i in range(4): a(f"v_cvt_pk_bf16_f32 v{dst+4*f+i}, v{s+2*i}, v{s+2*i+1}")

def build_dbg_srd(a):
    d = S_D
    a(f"s_mov_b32 s{d}, s26"); a(f"s_mov_b32 s{d+1}, s27"); a(f"s_mov_b32 s{d+2}, 256"); a(f"s_mov_b32 s{d+3}, 0x20000")
def claim_a(a):
    a(f"s_mov_b32 s{S_T0}, {EP_OFF}")
    a(f"buffer_load_dword v{VFL}, v{VZ}, {sr(S_F,4)}, s{S_T0} offen sc1")
def claim_b(a):
    a(f"v_readfirstlane_b32 s{S_N0}, v{VFL}")
    a("s_nop 0")
    a(f"s_add_u32 s{S_N0}, s{S_N0}, 1")
    a(f"s_max_u32 s{S_N0}, s{S_N0}, 1")
    a(f"v_mov_b32 v{VFL}, s{S_N0}"); a(f"v_mov_b32 v{VFL+1}, 0")
    a("s_mov_b64 exec, 1")
    a(f"buffer_atomic_cmpswap {vr(VFL,2)}, v{VZ}, {sr(S_D,4)}, 0 offen sc0 sc1")
    a("s_mov_b64 exec, -1")
def claim_c(a, tag):
    a(f"v_readfirstlane_b32 s{S_T1}, v{VFL}")
    a("s_nop 0")
    a(f"s_cmp_eq_u32 s{S_T1}, 0")
    a(f"s_cbranch_scc0 L_lost{tag}")
    a(f"v_mov_b32 v{VFL}, s{S_N0}")
    a(f"s_mov_b32 s{S_T0}, {EP_OFF}")
    a("s_mov_b64 exec, 1")
    a(f"buffer_store_dword v{VFL}, v{VZ}, {sr(S_F,4)}, s{S_T0} offen sc1")
    a("s_mov_b64 exec, -1")
    a(f"s_branch L_got{tag}")
    a.label(f"L_lost{tag}")
    a(f"s_mov_b32 s{S_N0}, s{S_T1}")
    a.label(f"L_got{tag}")
def nonce_load(a):
    a.vmem(f"buffer_load_dword v{VNON}, v{VZ}, {sr(S_D,4)}, 0 offen sc1", "non")
def get_nonce(a, tag):
    a(f"v_readfirstlane_b32 s{S_N0}, v{VNON}")
    a("s_nop 0")
    a(f"s_cmp_lg_u32 s{S_N0}, 0")
    a(f"s_cbranch_scc1 L_havenonce{tag}")
    claim_a(a); a("s_waitcnt vmcnt(0)"); claim_b(a); a("s_waitcnt vmcnt(0)"); claim_c(a, tag)
    a.label(f"L_havenonce{tag}")
    a(f"s_xor_b32 s{S_N1}, s{S_N0}, {TAGX}")
    a(f"v_mov_b32 v{VFL}, s{S_N0}"); a(f"v_mov_b32 v{VFL+1}, s{S_N1}")
def flag_store(a, soff):
    a("s_mov_b64 exec, 1")
    a.vmem(f"buffer_store_dwordx2 {vr(VFL,2)}, v{VZ}, {sr(S_F,4)}, s{soff} offen sc1", "flag")
    a("s_mov_b64 exec, -1")
def poll_issue(a, soff, vaddr):
    a.vmem(f"buffer_load_dwordx2 {vr(T2,2)}, v{vaddr}, {sr(S_F,4)}, s{soff} offen sc1", "poll")
def poll_check(a, done_label):
    a(f"v_cmp_ne_u32 vcc, s{S_N0}, v{T2}")
    a(f"v_cmp_ne_u32 s[4:5], s{S_N1}, v{T3}")
    a("s_or_b64 vcc, vcc, s[4:5]")
    a(f"s_cbranch_scc0 {done_label}")
def poll(a, tag, soff, vaddr):
    a(f"s_mov_b32 s{S_T1}, 0x200000")
    a("s_mov_b64 exec, 15")
    a.label(f"L_poll{tag}")
    a(f"buffer_load_dwordx2 {vr(T2,2)}, v{vaddr}, {sr(S_F,4)}, s{soff} offen sc1")
    a("s_waitcnt vmcnt(0)")
    poll_check(a, f"L_polld{tag}")
    a(f"s_sleep {cfg.slp}")
    a(f"s_sub_u32 s{S_T1}, s{S_T1}, 1")
    a(f"s_cmp_lg_u32 s{S_T1}, 0")
    a(f"s_cbranch_scc1 L_poll{tag}")
    a("s_branch L_end")
    a.label(f"L_polld{tag}")
    a("s_mov_b64 exec, -1")

def tick(a, tags=()):
    a.vm_wait(tags, also_lgkm0=True)
    a("s_barrier")
    trace(a)

S_WO = 4
S_WO = 8
VWO0, VWO1 = 16, 17
def wo_setup(a, v0, v1):
    a(f"s_lshl_b32 s{S_T0}, s{S_NB}, 8"); srd(a, S_WO, 12, S_T0, 0); a(f"s_sub_u32 s{S_WO+2}, {4096*1024}, s{S_T0}")
    a(f"v_lshrrev_b32 v{v0}, 4, v{LANE}")
    a(f"v_mul_u32_u24 v{v0}, 768, v{v0}")
    a(f"v_add_u32 v{v0}, v{VOV0}, v{v0}")
    a(f"s_lshl_b32 s{S_T0}, s{S_WV}, 13")
    a(f"v_add_u32 v{v0}, s{S_T0}, v{v0}")
    a(f"v_xor_b32 v{v1}, 0x80, v{v0}")
def headoff(a, pos, phase, dst, sh):
    a(f"s_add_u32 s{dst}, s{S_NB}, {pos}"); a(f"s_and_b32 s{dst}, s{dst}, 3"); a(f"s_lshl_b32 s{dst}, s{dst}, 1")
    a(f"s_lshl_b32 s{S_T1}, s{S_XQ}, 3"); a(f"s_add_u32 s{dst}, s{dst}, s{S_T1}")
    if phase: a(f"s_add_u32 s{dst}, s{dst}, 1")
    a(f"s_lshl_b32 s{dst}, s{dst}, {sh}")
SEQ = [(0, 0), (0, 1), (0, 2), (0, 3), (1, 0), (1, 1), (1, 2), (1, 3)]
GRP_LDS = [WB + 32768, WB + 65536, WB, 32768, WB + 32768, 0, WB + 32768, WB + 65536]
def wo_lds(g): return GRP_LDS[g >> 2] + (g & 3) * 8192
def wo_issue(a, g, v0, v1):
    ph, pos = SEQ[g >> 2]
    headoff(a, pos, ph, S_T3, 17)
    for k in range(2):
        a(f"s_add_u32 m0, s{S_W2K}, {wo_lds(g) + k*1024}")
        a(f"s_add_u32 s{S_T0}, s{S_T3}, {(32*(g&3) + k*4)*1024}")
        a.vmem(f"buffer_load_dwordx4 v{v1 if k else v0}, {sr(S_WO,4)}, s{S_T0} offen lds", ("wo", g))

def pace(nslots, t0, t1):
    n = 2 * nslots; T = t1 - t0
    out = {}
    for h in range(n):
        out.setdefault(t0 + (h * T) // n, []).append((h >> 1, h & 1))
    return out

def g1_aux_r1(a):
    A = cfg.ahead
    a("s_setprio 0")
    build_dbg_srd(a)
    a(f"s_add_u32 s{S_W}, s{S_W}, 256"); a(f"s_addc_u32 s{S_W+1}, s{S_W+1}, 0"); a(f"s_sub_u32 s{S_W+2}, s{S_W+2}, 256")
    wo_setup(a, VWO0, VWO1)
    def w2(v):
        kc(a, v >> 1, S_T2, 19)
        for k in range(2):
            a(f"s_add_u32 m0, s{S_WB}, {(v%4)*8192 + k*1024}")
            a(f"s_add_u32 s{S_T0}, s{S_T2}, {((v&1)*32 + k*4)*8192}")
            a.vmem(f"buffer_load_dwordx4 v{VOW1 if k else VOW0}, {sr(S_W,4)}, s{S_T0} offen lds", ("w2", v))
    mark = [None]
    def claimer(part, t):
        a(f"s_cmp_eq_u32 s{S_CL}, 0"); a(f"s_cbranch_scc0 L_nc{t}")
        if mark[0] is not None: a(f"s_waitcnt vmcnt({a.nvm - mark[0]})")
        part(); a.label(f"L_nc{t}")
        mark[0] = a.nvm
    plan = pace(16, cfg.q2_t0, 30)
    first_tick = {v: t for t, l in plan.items() for v, h in l if h == 0}
    issue = {}
    for v in range(16):
        issue.setdefault(v if v < 3 else first_tick[v-3] + 1, []).append(v)
    wo_t = {5 + 3*g: g for g in range(8)}
    touch_t = {9: 0, 15: 1, 21: 2, 25: 3} if cfg.touch else {}
    for t in range(32):
        a.c(f"G1 tick {t}")
        tags = [n for n in range(16, 20 + 2*t)]
        tags += [("w2", v) for v, h in plan.get(t, []) if h == 0]
        if t == 17: tags.append("non")
        if t == 30: tags += ["touch"]
        if t == 31: tags += [("wo", g) for g in range(8)] + ["id"]
        tick(a, tags)
        for v in issue.get(t, []): w2(v)
        if t in wo_t: wo_issue(a, wo_t[t], VWO0, VWO1)
        if t in touch_t:
            k = touch_t[t]
            a(f"s_lshr_b32 s{S_T3}, s{S_B}, 1"); a(f"s_lshl_b32 s{S_T1}, s{S_XQ}, 2"); a(f"s_add_u32 s{S_T3}, s{S_T3}, s{S_T1}")
            a(f"s_lshl_b32 s{S_T3}, s{S_T3}, 2"); a(f"s_and_b32 s{S_T1}, s{S_B}, 1"); a(f"s_add_u32 s{S_T3}, s{S_T3}, s{S_T1}")
            a(f"s_lshl_b32 s{S_T3}, s{S_T3}, 16"); a(f"s_add_u32 s{S_T3}, s{S_T3}, {(128 + 32*(k>>1) + 4*(k&1))*1024}")
            a.vmem(f"buffer_load_dwordx4 {vr(XR,4)}, v{VWO0}, {sr(S_WO,4)}, s{S_T3} offen", "touch")
        if t == 0: claimer(lambda: claim_a(a), t)
        if t == 4: claimer(lambda: claim_b(a), t)
        if t == 9: claimer(lambda: claim_c(a, "e"), t)
        for v, h in plan.get(t, []):
            if cfg.x_noq2 and v > 1: continue
            if h == 0: run(trreads(a, WB + (v % 4) * 8192, VF))
            run(acc_mfmas(a, VF, XR + 8*v, first=(v == 0), qbs=(h,)))
        if t == 14: nonce_load(a)
        if t == 17: get_nonce(a, "g"); id_publish(a)
        if t == 28: id_load(a, MX)
        if t == 30:
            a("s_nop 5")
            run(kreads(a, 79 % 8))
            scale_pack_q(a)
            set_va(a, 0)
        if t == 31: id_check(a)
    set_kv_pos(a, 18 + 64 + A)

VPOLL = 12
BUF_OF = [0, 1, 2, 0, 0, 1, 2, 0]
AB = [VF, KF]
def oloads(a, e, S_OO):
    ph, pos = SEQ[e]; buf = BUF_OF[e]
    for k in range(8):
        if k == 0:
            a(f"s_add_u32 s{S_THR}, s{S_NB}, {pos}"); a(f"s_and_b32 s{S_THR}, s{S_THR}, 3"); a(f"s_mul_i32 s{S_THR}, s{S_THR}, {8192 + cfg.opad}")
        if k == 4: a(f"s_add_u32 s{S_THR}, s{S_THR}, 4096")
        a.vmem(f"buffer_load_dwordx4 {vr(OB[buf]+4*k,4)}, v{VOST}, {sr(S_OO,4)}, s{S_THR} offen offset:{(k%4)*1024}{cfg.ofl}", ("o", 4*e + (k >> 1)))
def entry(a, e, nxt_e=None, extra=None, first=False):
    for ks in range(4):
        g = 4*e + ks
        a.vm_wait([("o", g)])
        ng = g + 1 if ks < 3 else (4*nxt_e if nxt_e is not None else None)
        nxt = trreads(a, wo_lds(ng), AB[(ks + 1) & 1]) if ng is not None else []
        ex = extra.get(ks, []) if extra else []
        lists = ([(nxt, 0, 12)] if nxt else []) + ([(ex, 0, 16)] if ex else [])
        interleave(a, acc_mfmas(a, AB[ks & 1], OB[BUF_OF[e]] + 8*ks, first=(first and ks == 0), qb_outer=False), spread(16, *lists))
def oproj_setup(a, S_OO):
    a(f"v_and_b32 v{VPOLL}, 3, v{LANE}"); a(f"v_lshlrev_b32 v{VPOLL}, {cfg.fsh}, v{VPOLL}")
    a(f"s_mul_i32 s{S_T0}, s{S_NB}, {8192 + cfg.opad}")
    a(f"s_sub_u32 s{S_OO}, s{S_O}, s{S_T0}"); a(f"s_subb_u32 s{S_OO+1}, s{S_O+1}, 0"); a(f"s_mov_b32 s{S_OO+2}, {4*(8192 + cfg.opad)}"); a(f"s_mov_b32 s{S_OO+3}, 0x20000")
def va_rotate(a):
    a(f"s_lshl_b32 s{S_T0}, s{S_XQ}, 6")
    for d in range(8): a(f"v_xor_b32 v{VA+d}, s{S_T0}, v{VA+d}")
def acc_lds(k):
    return 32768 + (k >> 1) * 8192 + (k & 1) * 1024

def g0_aux_r2(a):
    A = cfg.ahead
    S_OO = S_K
    last = 17 + 64 + A
    a.vm = []
    for n in range(last - A + 1, last + 1): a.vm += [n, n]
    a("s_setprio 0")
    TB = cfg.t_pub
    plan = pace(4, 34, 50)
    first_tick = {g: t for t, l in plan.items() for g, h in l if h == 0}
    refill = {}
    for g in range(8, 12): refill[33 + 4*(g - 8)] = g
    for g in range(16, 20): refill[first_tick[g - 16] + 1] = g
    assert len(refill) == 8
    for t in range(32, 64):
        a.c(f"G0 tick {t}")
        tags = [n for n in range(16, 20 + 2*t)]
        if t == 56: tags += ["non", "touch", "id"] + [("wo", g) for g in range(20)]
        tick(a, tags)
        if t == 32:
            build_dbg_srd(a)
            o_pack(a, OB[0])
            wo_setup(a, VOW0, VOW1)
            va_rotate(a)
            oproj_setup(a, S_OO)
        if t == 50 and cfg.touch:
            headoff(a, 3, 0, S_T3, 17)
            a(f"s_lshr_b32 s{S_T1}, s{S_B}, 1"); a(f"s_lshl_b32 s{S_T1}, s{S_T1}, 15"); a(f"s_add_u32 s{S_T3}, s{S_T3}, s{S_T1}")
            a(f"s_and_b32 s{S_T1}, s{S_B}, 1"); a(f"s_lshl_b32 s{S_T1}, s{S_T1}, 12"); a(f"s_add_u32 s{S_T3}, s{S_T3}, s{S_T1}")
            a.vmem(f"buffer_load_dwordx4 {vr(240,4)}, v{VOW0}, {sr(S_WO,4)}, s{S_T3} offen", "touch")
        if t == 52: nonce_load(a); id_load(a, MX)
        if t == 56: get_nonce(a, "h"); id_check(a)
        if t == TB: o_stores(a, OB[0])
        if t in refill: wo_issue(a, refill[t], VOW0, VOW1)
        for g, h in plan.get(t, []):
            if h == 0: run(trreads(a, wo_lds(g), VF))
            run(acc_mfmas(a, VF, OB[0] + 8*(g & 3), first=(g == 0), qbs=(h,)))
    run(trreads(a, wo_lds(4), AB[0]))
    assert A <= 4
    if not cfg.x_now3:
        for g in range(12, 16): wo_issue(a, g, VOW0, VOW1)
    a.vm_wait(["ost"])
    o_flag(a)
    stamp(a, 7)
    poll(a, "o1", S_POFF, VPOLL); a.vm = []
    stamp(a, 1)
    for e in (1, 2, 3): oloads(a, e, S_OO)
    a("s_barrier")
    stamp(a, 8)
    a("s_setprio 1")
    entry(a, 1, 2)
    a("s_barrier")
    entry(a, 2, 3); entry(a, 3)
    stamp(a, 9)
    a(f"v_add_u32 v{T1}, s{S_W2K}, v{VOST}")
    a(f"v_add_u32 v{T2}, 0x8000, v{T1}")
    a("s_nop 4")
    a("s_barrier")
    for k in range(16):
        off = acc_lds(k)
        a(f"ds_write_b128 v{T1 if off < 65536 else T2}, {vr(OACC+4*k,4)} offset:{off if off < 65536 else off - 0x8000}")
    a("s_waitcnt lgkmcnt(0)")

def g1_finish(a):
    S_OO = S_W
    va_base[0] = 0; a.vm = ["dummy"] * 8; a.lds = []
    va_rotate(a)
    run(trreads(a, wo_lds(16), AB[0]))
    o_pack(a, OB[0])
    o_stores(a, OB[0])
    stamp(a, 9)
    entry(a, 4, first=True)
    a.vm_wait(["ost"])
    o_flag(a)
    stamp(a, 7)
    wo_setup(a, VOW0, VOW1)
    oproj_setup(a, S_OO)
    a("s_barrier")
    for g in range(20, 28): wo_issue(a, g, VOW0, VOW1)
    a.vm_wait([("wo", g) for g in range(20, 28)])
    a("s_barrier")
    for g in range(28, 32): wo_issue(a, g, VOW0, VOW1)
    run(trreads(a, wo_lds(20), AB[0]))
    poll(a, "o2", S_POFF, VPOLL); a.vm = []
    stamp(a, 8)
    for e in (5, 6, 7): oloads(a, e, S_OO)
    entry(a, 5, 6)
    a("s_barrier")
    entry(a, 6, 7)
    a(f"v_add_u32 v{T1}, s{S_W2K}, v{VOST}")
    a(f"v_add_u32 v{T2}, 0x8000, v{T1}")
    a("s_barrier")
    GA = 184
    rd = []
    for k in range(16):
        off = acc_lds(k)
        rd.append(lambda k=k, off=off: a.ds(f"ds_read_b128 {vr(GA+4*k,4)}, v{T1 if off < 65536 else T2} offset:{off if off < 65536 else off - 0x8000}", rng(GA+4*k, 4)))
    entry(a, 7, None, {0: rd[:4], 1: rd[4:8], 2: rd[8:12], 3: rd[12:]})
    stamp(a, 3)
    a.lgkm0()
    a("s_nop 6")
    for i in range(64): a(f"v_add_f32 v{OACC+i}, v{OACC+i}, v{GA+i}")
    S_P = S_V; S_OUT = S_O; VOUT = 13
    PK = 184
    a(f"s_add_u32 s{S_T2}, s{S_GID}, s{S_NB}")
    a(f"s_lshl_b32 s{S_T0}, s{S_T2}, 18"); a(f"s_add_u32 s{S_T0}, s{S_T0}, {WS_P}"); srd(a, S_P, 28, S_T0, 262144)
    a(f"s_lshl_b32 s{S_T3}, s{S_WV}, 12")
    a(f"s_lshl_b32 s{S_SC}, s{S_XQ}, 14"); a(f"s_add_u32 s{S_SC}, s{S_SC}, s{S_T3}")
    slot = lambda d, i: PK + 12*(d-1) + 4*(i // 3) + (i % 3)
    for d in range(1, 4):
        a(f"s_xor_b32 s{S_T0}, s{S_XQ}, {d}"); a(f"s_lshl_b32 s{S_T0}, s{S_T0}, 16"); a(f"s_add_u32 s{S_T0}, s{S_T0}, s{S_SC}")
        for k in range(3):
            a(f"v_mov_b32 v{PK+12*(d-1)+4*k+3}, s{S_N0}")
            for i in range(3*k, min(8, 3*k+3)):
                src = OACC + 32*(i >> 2) + 8*d + 2*(i & 3)
                a(f"v_cvt_pk_bf16_f32 v{slot(d,i)}, v{src}, v{src+1}")
            if k == 2: a(f"v_mov_b32 v{PK+12*(d-1)+10}, s{S_N1}")
            a(f"buffer_store_dwordx4 {vr(PK+12*(d-1)+4*k,4)}, v{VOST}, {sr(S_P,4)}, s{S_T0} offen offset:{k*1024} sc1")
    a(f"s_lshl_b32 s{S_T1}, s{S_B}, 2"); a(f"s_add_u32 s{S_T1}, s{S_T1}, s{S_WV}"); a(f"s_lshl_b32 s{S_T1}, s{S_T1}, 16")
    a(f"s_lshl_b32 s{S_THR}, s{S_BR}, 10"); a(f"s_add_u32 s{S_T1}, s{S_T1}, s{S_THR}")
    a(f"s_lshl_b32 s{S_THR}, s{S_NB}, 8"); a(f"s_add_u32 s{S_T1}, s{S_T1}, s{S_THR}")
    a(f"s_lshl_b32 s{S_THR}, s{S_XQ}, 6"); a(f"s_add_u32 s{S_T1}, s{S_T1}, s{S_THR}")
    srd(a, S_OUT, 24, S_T1, 0); a(f"s_sub_u32 s{S_OUT+2}, {8*128*2048}, s{S_T1}")
    a(f"v_and_b32 v{T1}, 15, v{LANE}"); a(f"v_lshlrev_b32 v{VOUT}, 11, v{T1}")
    a(f"v_lshrrev_b32 v{T1}, 4, v{LANE}"); a(f"v_lshl_add_u32 v{VOUT}, v{T1}, 4, v{VOUT}")
    a(f"s_lshl_b32 s{S_SC}, s{S_XQ}, 16"); a(f"s_add_u32 s{S_SC}, s{S_SC}, s{S_T3}")
    RK = 120
    rslot = lambda d, i: RK + 12*(d-1) + 4*(i // 3) + (i % 3)
    a(f"s_mov_b32 s{S_T1}, 0x200000")
    a.label("L_pp")
    for d in range(1, 4):
        a(f"s_xor_b32 s{S_T0}, s{S_XQ}, {d}"); a(f"s_lshl_b32 s{S_T0}, s{S_T0}, 14"); a(f"s_add_u32 s{S_T0}, s{S_T0}, s{S_SC}")
        for k in range(3): a(f"buffer_load_dwordx4 {vr(RK+12*(d-1)+4*k,4)}, v{VOST}, {sr(S_P,4)}, s{S_T0} offen offset:{k*1024} sc1")
    a("s_waitcnt vmcnt(0)")
    a(f"v_xor_b32 v{T1}, s{S_N0}, v{RK+3}")
    for q in range(1, 9):
        a(f"v_xor_b32 v{T2}, s{S_N0}, v{RK+4*q+3}"); a(f"v_or_b32 v{T1}, v{T1}, v{T2}")
    for d in range(3):
        a(f"v_xor_b32 v{T2}, s{S_N1}, v{RK+12*d+10}"); a(f"v_or_b32 v{T1}, v{T1}, v{T2}")
    a(f"v_cmp_ne_u32 vcc, 0, v{T1}")
    a("s_cbranch_vccz L_ppd")
    a(f"s_sleep {cfg.slp}")
    a(f"s_sub_u32 s{S_T1}, s{S_T1}, 1"); a(f"s_cmp_lg_u32 s{S_T1}, 0"); a("s_cbranch_scc1 L_pp")
    a("s_branch L_end")
    a.label("L_ppd")
    stamp(a, 4)
    a(f"s_mov_b32 s{S_T0}, 0x8000")
    for d in range(1, 4):
        for i in range(8):
            p = rslot(d, i); o = OACC + 32*(i >> 2) + 2*(i & 3)
            a(f"v_lshlrev_b32 v{T1}, 16, v{p}")
            a(f"v_and_b32 v{T2}, 0xffff0000, v{p}")
            a(f"v_add_f32 v{o}, v{o}, v{T1}")
            a(f"v_add_f32 v{o+1}, v{o+1}, v{T2}")
    for qb in range(2):
        for i in range(4): a(f"v_cvt_pk_bf16_f32 v{PK+4*qb+i}, v{OACC+32*qb+2*i}, v{OACC+32*qb+2*i+1}")
    a("s_nop 1")
    lane_fix(a, [PK, PK+4])
    a("s_nop 1")
    a(f"buffer_store_dwordx4 {vr(PK,4)}, v{VOUT}, {sr(S_OUT,4)}, 0 offen")
    a(f"buffer_store_dwordx4 {vr(PK+4,4)}, v{VOUT}, {sr(S_OUT,4)}, s{S_T0} offen")

def gen_kernel(a):
    name = KN + "_kernel"
    A = cfg.ahead
    a.raw(".p2align 8"); a.raw(f".type {name},@function"); a.label(name)
    a("s_cmp_ge_u32 s2, 256"); a("s_cbranch_scc1 L_end")
    a("s_load_dwordx16 s[4:19], s[0:1], 0")
    a("s_load_dwordx4 s[20:23], s[0:1], 64")
    a("s_load_dwordx4 s[24:27], s[0:1], 80")
    a("s_load_dwordx2 s[28:29], s[0:1], 96")
    a(f"v_lshrrev_b32 v{U1}, 6, v0")
    a(f"v_and_b32 v{LANE}, 63, v0")
    a(f"v_readfirstlane_b32 s{S_WV}, v{U1}")
    a(f"s_bfe_u32 s{S_BR}, s2, 0x10002")
    a(f"s_and_b32 s{S_XQ}, s2, 3")
    a(f"s_bfe_u32 s{S_NB}, s2, 0x20003")
    a(f"s_bfe_u32 s{S_B}, s2, 0x30005")
    a(f"s_lshr_b32 s{S_GRP}, s{S_WV}, 2"); a(f"s_and_b32 s{S_WV}, s{S_WV}, 3")
    a(f"s_lshl_b32 s{S_H}, s{S_XQ}, 2"); a(f"s_add_u32 s{S_H}, s{S_H}, s{S_NB}"); a(f"s_lshl_b32 s{S_H}, s{S_H}, 1")
    if cfg.rot:
        a(f"s_lshl_b32 s{S_ROT}, s{S_NB}, 1"); a(f"s_add_u32 s{S_ROT}, s{S_ROT}, s{S_B}"); a(f"s_and_b32 s{S_ROT}, s{S_ROT}, {cfg.rotm}")
    else:
        a(f"s_mov_b32 s{S_ROT}, 0")
    a(f"s_lshl_b32 s{S_W2K}, s{S_WV}, 11")
    a(f"s_lshl_b32 s{S_XB}, s{S_WV}, 12"); a(f"s_add_u32 s{S_XB}, s{S_XB}, {XB}")
    setup_dma_addrs(a)
    a("s_waitcnt lgkmcnt(0)")
    zero_stamps(a); stamp(a, 0); cstamp(a, 10)
    a(f"s_cmp_eq_u32 s{S_BR}, 0")
    for i in range(5): a(f"s_cselect_b64 {sr(4+2*i,2)}, {sr(4+2*i,2)}, {sr(14+2*i,2)}")
    a(f"s_lshl_b32 s{S_T0}, s{S_B}, 17"); srd(a, S_X, 4, S_T0, 131072)
    a(f"s_lshl_b32 s{S_T0}, s{S_H}, 8"); srd(a, S_W, 10, S_T0, 0)
    a(f"s_sub_u32 s{S_W+2}, {512*8192}, s{S_T0}")
    a(f"s_add_u32 s{S_WB}, s{S_W2K}, {WB}")
    a(f"s_lshl_b32 s{S_T0}, s{S_B}, 5"); a(f"s_add_u32 s{S_T0}, s{S_T0}, s{S_H}"); a(f"s_lshl_b32 s{S_T0}, s{S_T0}, 18")
    srd(a, S_K, 6, S_T0, 524288); srd(a, S_V, 8, S_T0, 524288)
    a(f"s_lshl_b32 s{S_GID}, s{S_BR}, 3"); a(f"s_add_u32 s{S_GID}, s{S_GID}, s{S_B}"); a(f"s_lshl_b32 s{S_GID}, s{S_GID}, 2")
    a(f"s_lshl_b32 s{S_T0}, s{S_GRP}, 6"); a(f"s_add_u32 s{S_T0}, s{S_T0}, s{S_GID}"); a(f"s_add_u32 s{S_T0}, s{S_T0}, s{S_XQ}")
    a(f"s_lshl_b32 s{S_T0}, s{S_T0}, 2"); a(f"s_add_u32 s{S_T0}, s{S_T0}, s{S_WV}"); a(f"s_lshl_b32 s{S_T0}, s{S_T0}, 2"); a(f"s_add_u32 s{S_T0}, s{S_T0}, s{S_NB}")
    a(f"s_mul_i32 s{S_T0}, s{S_T0}, {8192 + cfg.opad}"); a(f"s_add_u32 s{S_T0}, s{S_T0}, {WS_O}")
    srd(a, S_O, 28, S_T0, 8192)
    a(f"s_add_u32 s{S_F}, s28, {WS_F}"); a(f"s_addc_u32 s{S_F+1}, s29, 0"); a(f"s_mov_b32 s{S_F+2}, {F_BYTES}"); a(f"s_mov_b32 s{S_F+3}, 0x20000")
    a(f"s_add_u32 s{S_POFF}, s{S_GID}, s{S_XQ}"); a(f"s_lshl_b32 s{S_POFF}, s{S_POFF}, 3"); a(f"s_add_u32 s{S_POFF}, s{S_POFF}, s{S_WV}")
    a(f"s_lshl_b32 s{S_T0}, s{S_GRP}, 2"); a(f"s_add_u32 s{S_POFF}, s{S_POFF}, s{S_T0}"); a(f"s_lshl_b32 s{S_POFF}, s{S_POFF}, {cfg.fsh + 2}")
    a(f"s_lshl_b32 s{S_FOFF}, s{S_NB}, {cfg.fsh}"); a(f"s_add_u32 s{S_FOFF}, s{S_FOFF}, s{S_POFF}")
    a(f"s_add_u32 s{S_IOFF}, s{S_GID}, s{S_XQ}"); a(f"s_lshl_b32 s{S_IOFF}, s{S_IOFF}, 9"); a(f"s_add_u32 s{S_IOFF}, s{S_IOFF}, {FI_OFF}")
    a(f"s_lshl_b32 s{S_CL}, s2, 2"); a(f"s_add_u32 s{S_CL}, s{S_CL}, s{S_WV}")
    a(f"s_mov_b32 s{S_THR}, 0x41000000")
    sc = math.log2(math.e) / math.sqrt(128.0)
    a(f"s_mov_b32 s{S_SC}, 0x{struct.unpack('<I', struct.pack('<f', sc))[0]:08x}")
    if cfg.stamp: a(f"s_mov_b32 s{S_TRI}, 0")
    a(f"s_cmp_lg_u32 s{S_GRP}, 0"); a("s_cbranch_scc1 L_g1")
    setup_rest(a)
    if cfg.warm: code_warm(a, "a", S_X, 240)
    set_kv_pos(a, 18 + A)
    p0_compute(a)
    set_va(a, 0)
    scale_pack_q(a)
    a("s_barrier")
    run(kreads(a, 0))
    g0_lds = list(a.lds)
    a("s_branch L_att")
    a.label("L_g1")
    a.lds = []; a.vm = []
    a("s_setprio 3")
    set_kv_pos(a, 16)
    p0_loader(a)
    g1_aux_r1(a)
    a.lds = g0_lds
    a.label("L_att")
    head_prologue(a)
    stamp(a, 5); cstamp(a, 11)
    attention_loop(a)
    stamp(a, 6)
    a(f"s_cmp_lg_u32 s{S_GRP}, 0"); a("s_cbranch_scc1 L_g1fin")
    g0_aux_r2(a)
    a("s_branch L_fin")
    a.label("L_g1fin")
    g1_finish(a)
    a.label("L_fin")
    dump_stamps(a)
    a.label("L_end")
    a("s_endpgm")
    for rid, sb in rare_blocks: rare(a, rid, sb)
    a.label("L_codeend")

def gen(**kw):
    for k, v in kw.items(): setattr(cfg, k, v)
    rare_id[0] = 0; rare_blocks.clear()
    a = Asm()
    name = KN + "_kernel"
    a.raw("; @launch grid=(256,1,1) block=(512,1,1) lds=163840")
    a.raw('.amdgcn_target "amdgcn-amd-amdhsa--gfx950"'); a.raw(".text")
    a.raw(f".globl {name}")
    gen_kernel(a)
    a.raw('.section .rodata,"a"'); a.raw(".p2align 6")
    a.raw(f".amdhsa_kernel {name}")
    for d in ["next_free_vgpr 256", "next_free_sgpr 102", "accum_offset 256", "group_segment_fixed_size 0", "kernarg_size 104",
              "user_sgpr_count 2", "user_sgpr_kernarg_segment_ptr 1", "system_sgpr_workgroup_id_x 1"]:
        a.raw("  .amdhsa_" + d)
    a.raw(".end_amdhsa_kernel")
    return a.text()

if __name__ == "__main__":
    open(f"cdna_kernels/{KN}.s", "w").write(gen())
    open("k11_a.s", "w").write(gen(stamp=True))
    open("k11_b.s", "w").write(gen(ofl=" nt"))
    open("k11_c.s", "w").write(gen(ofl=""))
    open("k11_d.s", "w").write(gen(ofl=" sc1", opad=1280))
    open("k11_e.s", "w").write(gen(ofl=" sc1", opad=0, touch=False))
```

```python
import sys, math, struct
sys.path.insert(0, "gen")
from emit import *
KN = "concat_heads__mha_block_cached__gqa_block_cached__near_ridge"

class Cfg:
    nt_kv = True
    stamp = False
    ahead = 4
    rot = True
    slp = 2
    t_pub = 55
    t_poll = 60
    touch = True
    x_cal = 0
    x_p0slow = 0
    x_noq2 = False
    pk_o = False
    pk_q = False
    mov64 = True
    warm = 1
    tagp = True
    rotm = 4
    local = True
    y1k = 4
    g0prio = 1
    otouch = 0
    ot_t = (5, 28)
    e_spread = 16
    e_wait = 4
    flag_first = True
    both = False
    merge = False
    g1first = True
    bp_early = True
    pre62 = 0
    z1_after = 8
    o_ticks = (0, 1, 1)
    t_con = 63
    stag = None
    wo_ticks = (13, 15, 17, 19, 21, 23, 25, 27)
    tch_ticks = (22, 26, 28, 30)
    q2_dbl = (3, 8, 13, 18, 22)
    rotv = None
    fast_n = 0
    wt2 = 0
    p_ack = True
    g1tp = 3
    g0tp = 2
    wdep = None
    w3first = True
    o2t = 0
    qk_ord = 0
    pv_ord = 0
    ofl = " sc1"
    fsh = 7
    opad = 0
    x_now3 = False
    st_n = 1
    q2_t0 = 3
    dma_pos = 3
cfg = Cfg()

MFMA = "v_mfma_f32_16x16x32_bf16"
KA = 0; VA = 4
VOK0, VOK1, VOV0, VOV1 = 12, 13, 14, 15
LS = 16; MX = 18; T1 = 19; T2 = 20; T3 = 21
XRA = 16; VOX0 = 20; VOX1 = 21
LANE = 22; VOST = 23
VF = 24; OACC = 56; QF = 120; KF = 152
SB = [184, 200]; NEGM = 216; PB = 232
XF = [184, 200]
XR = 120
VOW0 = 248; VOW1 = 249; VNON = 250; T4 = 251
VFL = 252; VZ = 254; VTR = 255
OB = [120, 184, 216]
S_K, S_V, S_X, S_W, S_O = 32, 36, 40, 44, 48
S_WV, S_BR, S_H, S_B, S_W2K, S_OFFK, S_OFFV, S_CNT, S_T0, S_THR, S_SC, S_T1 = 52, 53, 54, 55, 56, 57, 58, 59, 60, 61, 62, 63
S_ROT, S_T2, S_T3 = 30, 31, 3
S_GRP, S_XQ, S_NB = 96, 97, 98
S_N0, S_N1 = 99, 100
S_XB = 101
S_F = 16
S_FOFF = 20; S_TRI = 22; S_GID = 21; S_CL = 14; S_WB = 15; S_POFF = 23
S_D = S_X
S_MODE = 6; S_IOFF = 7
WS_P = 0x1000000
WS_F = 0x3000000
WS_O = 0x4000000
FO_BYTES = 64 * 32 * 128
FI_OFF = FO_BYTES
FC_OFF = FI_OFF + 64 * 4 * 128
EP_OFF = FC_OFF + FO_BYTES
F_BYTES = EP_OFF + 128
TAGX = 0x5bd1e995
WB = 65536
XB = WB + 49152

NST = 14
def stamp(a, k):
    if cfg.stamp: a(f"s_memrealtime {sr(64+2*k,2)}")
def cstamp(a, k):
    if cfg.stamp: a(f"s_memtime {sr(64+2*k,2)}")
trace_id = [0]
def trace(a):
    if cfg.stamp:
        a(f"s_mov_b32 m0, s{S_TRI}"); a("s_nop 0"); a(f"v_writelane_b32 v{VTR}, s92, m0"); a(f"s_add_u32 s{S_TRI}, s{S_TRI}, 1")
        trace_id[0] += 1
        a(f"s_cmp_eq_u32 s{S_WV}, 1"); a(f"s_cbranch_scc1 L_trc{trace_id[0]}"); a("s_memrealtime s[92:93]"); a(f"s_branch L_trd{trace_id[0]}")
        a.label(f"L_trc{trace_id[0]}"); a("s_memtime s[92:93]"); a.label(f"L_trd{trace_id[0]}")
def dump_stamps(a):
    if not cfg.stamp: return
    t0 = S_T0
    a("s_waitcnt vmcnt(0) lgkmcnt(0)")
    a(f"s_mov_b32 m0, s{S_TRI}"); a("s_nop 0"); a(f"v_writelane_b32 v{VTR}, s92, m0")
    stamp(a, NST-1); cstamp(a, 12)
    a(f"s_getreg_b32 s92, hwreg(HW_REG_XCC_ID)"); a(f"s_getreg_b32 s93, hwreg(HW_REG_HW_ID)")
    a("s_waitcnt lgkmcnt(0)")
    a(f"s_add_u32 s28, s28, 0x2000000"); a("s_addc_u32 s29, s29, 0"); a("s_mov_b32 s30, 0x100000"); a("s_mov_b32 s31, 0x20000")
    for k in range(NST): a(f"v_mov_b32 v{32+k}, s{64+2*k}")
    a("v_mov_b32 v46, s92"); a("v_mov_b32 v47, s93")
    a(f"s_lshl_b32 s{t0}, s{S_GRP}, 8"); a(f"s_add_u32 s{t0}, s{t0}, s2")
    a(f"s_lshl_b32 s{t0}, s{t0}, 2"); a(f"s_add_u32 s{t0}, s{t0}, s{S_WV}"); a(f"s_lshl_b32 s{t0}, s{t0}, 6"); a(f"v_mov_b32 v30, s{t0}")
    a(f"s_lshl_b32 s{t0}, s{t0}, 2"); a(f"s_add_u32 s{t0}, s{t0}, 0x40000"); a(f"v_lshlrev_b32 v31, 2, v{LANE}")
    a(f"buffer_store_dword v{VTR}, v31, s[28:31], s{t0} offen")
    a(f"v_cmp_eq_u32 vcc, 0, v{LANE}"); a("s_and_saveexec_b64 s[94:95], vcc")
    for k in range(4): a(f"buffer_store_dwordx4 v[{32+4*k}:{35+4*k}], v30, s[28:31], 0 offen offset:{16*k}")
def zero_stamps(a):
    if cfg.stamp:
        a("s_mov_b32 s92, 0"); a(f"v_mov_b32 v{VTR}, 0")
        for k in range(NST): a(f"s_mov_b64 {sr(64+2*k,2)}, 0")

def srd(a, d, plo, off_sgpr, nbytes):
    a(f"s_add_u32 s{d}, s{plo}, s{off_sgpr}")
    a(f"s_addc_u32 s{d+1}, s{plo+1}, 0")
    a(f"s_mov_b32 s{d+2}, {nbytes}")
    a(f"s_mov_b32 s{d+3}, 0x20000")
def interleave(a, mfmas, fillers):
    for i, m in enumerate(mfmas):
        m()
        if i < len(fillers):
            for f in fillers[i]: f()
def spread(nslots, *lists):
    out = [[] for _ in range(nslots)]
    for (lst, lo, hi) in lists:
        n = len(lst)
        for i, x in enumerate(lst):
            out[lo + (i * (hi - lo)) // n].append(x)
    return out
def run(ops):
    for o in ops: o()

def is_k(n): return (n < 18) or (n % 2 == 1)
def kv_index_before(n):
    ks = sum(1 for m in range(16, n) if is_k(m)); return ks, (n - 16) - ks
def dma_kv(a, n):
    slot = n % 8
    fl = " nt" if cfg.nt_kv else ""
    v0, v1, s, so = (VOK0, VOK1, S_K, S_OFFK) if is_k(n) else (VOV0, VOV1, S_V, S_OFFV)
    return [lambda: (a(f"s_add_u32 m0, s{S_W2K}, {slot*8192}"), a("s_nop 0"),
                     a.vmem(f"buffer_load_dwordx4 v{v0}, {sr(s,4)}, s{so} offen{fl} lds", n)),
            lambda: (a.vmem(f"buffer_load_dwordx4 v{v1}, {sr(s,4)}, s{so} offen offset:1024{fl} lds", n),
                     a(f"s_add_u32 s{so}, s{so}, 8192"))]
def set_kv_pos(a, n):
    k, v = kv_index_before(n)
    a(f"s_add_u32 s{S_OFFK}, s{S_W2K}, {k*8192}"); a(f"s_add_u32 s{S_OFFV}, s{S_W2K}, {v*8192}")

kf = lambda s, kb: KF + 8*s + 4*kb
def kreads(a, slot):
    return [lambda s=s, kb=kb: a.ds(f"ds_read_b128 {vr(kf(s,kb),4)}, v{KA+s} offset:{slot*8192 + kb*4096}", rng(kf(s,kb), 4)) for s in range(4) for kb in range(2)]
va_base = [0]
def set_va(a, base):
    d = base - va_base[0]
    if d:
        for i in range(8): a(f"v_add_u32 v{VA+i}, {d & 0xffffffff:#x}, v{VA+i}")
        va_base[0] = base
def trreads(a, addr, base):
    win = addr & ~0xffff
    ops = []
    for db in range(8):
        for p in range(2):
            r = base + 4*db + 2*p
            def op(r=r, db=db, p=p):
                set_va(a, win)
                a.ds(f"ds_read_b64_tr_b16 {vr(r,2)}, v{VA+db} offset:{addr - win + p*4096}", rng(r, 2))
            ops.append(op)
    return ops
def qk_mfmas(a, sbuf, negm):
    ms = []
    if cfg.qk_ord == 0: order = [(s, kb, qb) for s in range(4) for kb in range(2) for qb in range(2)]
    elif cfg.qk_ord == 1: order = [(s, kb, qb) for s in range(4) for qb in range(2) for kb in range(2)]
    elif cfg.qk_ord == 2: order = [(s, kb, qb) for kb in range(2) for qb in range(2) for s in range(4)]
    else: order = [(s, kb, qb ^ kb) for s in range(4) for kb in range(2) for qb in range(2)]
    for s, kb, qb in order:
        def m(s=s, kb=kb, qb=qb):
            a.need(rng(kf(s,kb), 4))
            d = sbuf + 8*qb + 4*kb
            c = (vr(NEGM + 4*qb, 4) if negm else "0") if s == 0 else vr(d, 4)
            a(f"{MFMA} {vr(d,4)}, {vr(kf(s,kb),4)}, {vr(QF+16*qb+4*s,4)}, {c}")
        ms.append(m)
    return ms
def acc_mfmas(a, af, bf, first=False, bneed=False, qbs=(0, 1), qb_outer=True, wgrp=1):
    order = [(qb, db) for qb in qbs for db in range(8)] if qb_outer else [(qb, db) for db in range(8) for qb in qbs]
    ms = []
    for qb, db in order:
        def m(qb=qb, db=db):
            f = af + 4*db
            a.need(list(rng(af + 4*wgrp*(db // wgrp), 4*wgrp)) + (list(rng(bf+4*qb, 4)) if bneed else []))
            d = OACC + 32*qb + 4*db
            a(f"{MFMA} {vr(d,4)}, {vr(f,4)}, {vr(bf+4*qb,4)}, {'0' if first else vr(d,4)}")
        ms.append(m)
    return ms
def maxn(a, dst, sb, n):
    ops = [lambda: a(f"v_max3_f32 v{dst}, v{sb}, v{sb+1}, v{sb+2}")]
    for i in range(3, n-1, 2):
        ops.append(lambda i=i: a(f"v_max3_f32 v{dst}, v{dst}, v{sb+i}, v{sb+i+1}"))
    ops.append(lambda: a(f"v_max_f32 v{dst}, v{dst}, v{sb+n-1}"))
    return ops
def xreduce(a, x, t, op):
    for sw in ("v_permlane32_swap_b32", "v_permlane16_swap_b32"):
        a(f"v_mov_b32 v{t}, v{x}")
        a("s_nop 1")
        a(f"{sw} v{t}, v{x}")
        a("s_nop 1")
        a(f"{op} v{x}, v{x}, v{t}")

rare_id = [0]
rare_blocks = []
def body(a, j, dmas_n, vmwait, do_qk=True, dp=None):
    cur = SB[j & 1]; nxt = SB[(j + 1) & 1]
    vslot = (18 + 2*j) % 8; kslot = (19 + 2*j) % 8
    a.c(f"---- body phase {j}")
    a(f"s_waitcnt vmcnt({vmwait}) lgkmcnt(0)"); a.lds = []
    a("s_barrier")
    trace(a)
    vreads = trreads(a, vslot*8192, VF)
    exps = [lambda i=i: a(f"v_exp_f32 v{cur+i}, v{cur+i}") for i in range(16)]
    cvts = [lambda i=i: a(f"v_cvt_pk_bf16_f32 v{PB+i}, v{cur+2*i}, v{cur+2*i+1}") for i in range(8)]
    adds = [lambda i=i: a(f"v_add_f32 v{LS+(i>>3)}, v{LS+(i>>3)}, v{cur+i}") for i in range(16)]
    dmas = []
    for n in dmas_n: dmas += dma_kv(a, n)
    if do_qk:
        if dp is None: dp = cfg.dma_pos
        f = spread(16, (dmas if dp < 2 else [], 8*(dp & 1), 8 + 8*(dp & 1)), (vreads, 0, 12), (exps, 0, 16))
        for i in range(4): f[4 + 3*i].append(cvts[i])
        if cfg.pv_ord:
            for i in range(3): f[11 + 2*i].append(cvts[4+i])
        interleave(a, qk_mfmas(a, nxt, True), f)
        f = spread(16, (dmas if dp >= 2 else [], 8*(dp & 1), 8 + 8*(dp & 1)), (kreads(a, kslot), 0, 8), (adds[:8], 0, 8), (maxn(a, MX, nxt, 16), 8, 16), (adds[8:], 8, 16))
        if cfg.pv_ord:
            a("s_nop 0"); cvts[7](); a("s_nop 1")
            interleave(a, acc_mfmas(a, VF, PB, qb_outer=False), f)
        else:
            for i in range(4): f[1 + i].append(cvts[4+i])
            interleave(a, acc_mfmas(a, VF, PB), f)
        rid = rare_id[0]; rare_id[0] += 1
        a(f"v_cmp_lt_f32 vcc, s{S_THR}, v{MX}")
        a(f"s_cbranch_vccnz L_rare{rid}")
        a.label(f"L_back{rid}")
        rare_blocks.append((rid, nxt))
    else:
        run(vreads)
        a(f"s_cmp_lg_u32 s{S_GRP}, 0"); a("s_cbranch_scc1 L_nodma"); run(dmas); a.label("L_nodma")
        run(exps)
        a("s_nop 0")
        run(cvts)
        a("s_nop 1")
        interleave(a, acc_mfmas(a, VF, PB), spread(16, (adds, 0, 16)))

def rare(a, rid, sb):
    a.label(f"L_rare{rid}")
    for qb in range(2):
        run(maxn(a, MX, sb + 8*qb, 8))
        xreduce(a, MX, T1, "v_max_f32")
        a(f"v_max_f32 v{MX}, 0, v{MX}")
        a(f"v_exp_f32 v{T2}, -v{MX}")
        for i in range(4): a(f"v_sub_f32 v{NEGM+4*qb+i}, v{NEGM+4*qb+i}, v{MX}")
        for i in range(8): a(f"v_sub_f32 v{sb+8*qb+i}, v{sb+8*qb+i}, v{MX}")
        a(f"v_mul_f32 v{LS+qb}, v{LS+qb}, v{T2}")
        for i in range(32): a(f"v_mul_f32 v{OACC+32*qb+i}, v{OACC+32*qb+i}, v{T2}")
    a(f"s_branch L_back{rid}")

U1, U2, U3, U4 = 24, 25, 26, 27
def setup_dma_addrs(a):
    a(f"v_lshrrev_b32 v{U1}, 4, v{LANE}")
    a(f"v_and_b32 v{U2}, 15, v{LANE}")
    a(f"v_lshlrev_b32 v{U3}, 1, v{U1}")
    a(f"v_xor_b32 v{U3}, v{U3}, v{U2}")
    a(f"v_lshlrev_b32 v{U3}, 4, v{U3}")
    a(f"v_lshl_add_u32 v{VOV0}, v{U1}, 8, v{U3}")
    a(f"v_lshl_add_u32 v{VOW0}, v{U1}, 13, v{U3}")
    a(f"s_lshl_b32 s{S_T0}, s{S_WV}, 16")
    a(f"v_add_u32 v{VOW0}, s{S_T0}, v{VOW0}")
    a(f"v_xor_b32 v{VOW1}, 0x80, v{VOW0}")
    a(f"v_lshrrev_b32 v{U3}, 3, v{LANE}")
    a(f"v_and_b32 v{U4}, 7, v{LANE}")
    a(f"v_xor_b32 v{U4}, v{U4}, v{U1}")
    a(f"v_lshlrev_b32 v{VOX0}, 10, v{U3}")
    a(f"v_lshl_add_u32 v{VOX0}, v{U4}, 4, v{VOX0}")
    a(f"s_lshl_b32 s{S_T0}, s{S_WV}, 15")
    a(f"v_add_u32 v{VOX0}, s{S_T0}, v{VOX0}")
    a(f"v_xor_b32 v{VOX1}, 64, v{VOX0}")
def setup_rest(a):
    a(f"v_xor_b32 v{VOV1}, 0x80, v{VOV0}")
    a(f"s_and_b32 s{S_T0}, s{S_WV}, 1"); a(f"s_lshl_b32 s{S_T0}, s{S_T0}, 3")
    a(f"v_add_u32 v{U3}, s{S_T0}, v{U1}")
    a(f"v_xor_b32 v{VOK0}, v{U3}, v{U2}")
    a(f"v_xor_b32 v{VOK1}, 4, v{VOK0}")
    a(f"v_lshlrev_b32 v{VOK0}, 4, v{VOK0}"); a(f"v_lshlrev_b32 v{VOK1}, 4, v{VOK1}")
    a(f"v_lshl_add_u32 v{VOK0}, v{U1}, 8, v{VOK0}"); a(f"v_lshl_add_u32 v{VOK1}, v{U1}, 8, v{VOK1}")
    a(f"v_lshrrev_b32 v{U3}, 1, v{U2}")
    a(f"v_lshrrev_b32 v{U4}, 1, v{U1}")
    a(f"v_xor_b32 v{U3}, v{U3}, v{U4}")
    a(f"v_lshlrev_b32 v{U3}, 4, v{U3}")
    a(f"v_lshl_add_u32 v{XRA}, v{U2}, 7, v{U3}")
    a(f"v_and_b32 v{U4}, 1, v{U1}")
    a(f"v_lshl_add_u32 v{XRA}, v{U4}, 3, v{XRA}")
    a(f"v_add_u32 v{XRA}, s{S_XB}, v{XRA}")
    for i in range(1, 4): a(f"v_xor_b32 v{XRA+i}, {i<<5}, v{XRA}")
    a(f"v_xor_b32 v{KA}, v{U1}, v{U2}")
    a(f"v_lshlrev_b32 v{KA}, 4, v{KA}")
    a(f"v_lshl_add_u32 v{KA}, v{U2}, 8, v{KA}")
    for s in range(1, 4): a(f"v_xor_b32 v{KA+s}, {s<<6}, v{KA}")
    a(f"v_lshrrev_b32 v{U3}, 2, v{LANE}")
    a(f"v_and_b32 v{U4}, 7, v{U3}")
    a(f"v_lshlrev_b32 v{U4}, 5, v{U4}")
    a(f"v_lshl_add_u32 v{VA}, v{U3}, 8, v{U4}")
    a(f"v_and_b32 v{U3}, 3, v{LANE}")
    a(f"v_lshl_add_u32 v{VA}, v{U3}, 3, v{VA}")
    a(f"v_add_u32 v{VA}, {WB}, v{VA}")
    for db in range(1, 8): a(f"v_xor_b32 v{VA+db}, {db<<5}, v{VA}")
    va_base[0] = WB
    a(f"v_lshlrev_b32 v{VOST}, 4, v{LANE}")
    a(f"v_mov_b32 v{VZ}, 0")

def xreads(a, u, base):
    ops = []
    for sp in range(2):
        for qb in range(2):
            for p in range(2):
                r = base + 8*sp + 4*qb + 2*p
                ops.append(lambda r=r, sp=sp, qb=qb, p=p: a.ds(f"ds_read_b64 {vr(r,2)}, v{XRA+2*sp+p} offset:{(u%3)*16384 + qb*2048}", rng(r, 2)))
    return ops

def code_warm(a, tag, d, dst):
    name = KN + "_kernel"
    a(f"s_lshr_b32 s{S_T0}, s2, 3"); a(f"s_lshl_b32 s{S_T0}, s{S_T0}, 2"); a(f"s_add_u32 s{S_T0}, s{S_T0}, s{S_WV}")
    a(f"s_cmp_lt_u32 s{S_T0}, (L_codeend-{name})>>10"); a(f"s_cbranch_scc0 L_nowarm{tag}")
    a(f"s_lshl_b32 s{S_T0}, s{S_T0}, 10")
    a(f"s_getpc_b64 {sr(d,2)}")
    a.label(f"L_pc{tag}")
    a(f"s_sub_u32 s{d}, s{d}, L_pc{tag}-{name}"); a(f"s_subb_u32 s{d+1}, s{d+1}, 0")
    a(f"s_add_u32 s{d}, s{d}, s{S_T0}"); a(f"s_addc_u32 s{d+1}, s{d+1}, 0")
    a(f"v_mov_b32 v{dst+5}, s{d+1}")
    a(f"v_add_co_u32 v{dst+4}, vcc, s{d}, v{VOST}")
    a("s_nop 1")
    a(f"v_addc_co_u32 v{dst+5}, vcc, 0, v{dst+5}, vcc")
    a(f"global_load_dwordx4 {vr(dst,4)}, {vr(dst+4,2)}, off")
    a.label(f"L_nowarm{tag}")

def p0_compute(a):
    AB = [VF, KF]
    waddr = lambda v: WB + ((v >> 1) % 3) * 16384 + (v & 1) * 8192
    wreads = lambda v: trreads(a, waddr(v), AB[v & 1])
    wm = lambda v: acc_mfmas(a, AB[v & 1], XF[(v >> 1) & 1] + 8*(v & 1), first=(v == 0), bneed=True, qb_outer=False)
    stamp(a, 1)
    a("s_barrier")
    stamp(a, 2)
    run(xreads(a, 0, XF[0])); run(wreads(0))
    for u in range(8):
        a.c(f"q1 step {u}")
        interleave(a, wm(2*u), spread(16, (wreads(2*u+1), 0, 10)))
        if cfg.x_p0slow: a(f"s_sleep {cfg.x_p0slow}")
        a.lgkm0()
        a("s_barrier")
        interleave(a, wm(2*u+1), spread(16, (xreads(a, u+1, XF[(u+1) & 1]), 0, 4), (wreads(2*u+2), 4, 14)) if u < 7 else [])

def kc(a, u, dst, sh):
    a(f"s_add_u32 s{dst}, s{S_ROT}, {u}"); a(f"s_and_b32 s{dst}, s{dst}, 7"); a(f"s_lshl_b32 s{dst}, s{dst}, {sh}")
def p0_loader(a):
    A = cfg.ahead
    def pair(u):
        kc(a, u, S_T3, 7)
        for i in range(4):
            a(f"s_add_u32 m0, s{S_XB}, {(u%3)*16384 + i*1024}")
            a(f"s_add_u32 s{S_T0}, s{S_T3}, {i*8192}")
            a.vmem(f"buffer_load_dwordx4 v{VOX1 if i & 1 else VOX0}, {sr(S_X,4)}, s{S_T0} offen lds", ("p", u))
        a(f"s_lshl_b32 s{S_T2}, s{S_T3}, 12")
        for i in range(4):
            half, k = i >> 1, i & 1
            a(f"s_add_u32 m0, s{S_WB}, {(u%3)*16384 + half*8192 + k*1024}")
            a(f"s_add_u32 s{S_T0}, s{S_T2}, {(half*32 + k*4)*8192}")
            a.vmem(f"buffer_load_dwordx4 v{VOW1 if k else VOW0}, {sr(S_W,4)}, s{S_T0} offen lds", ("p", u))
    pair(0)
    rest_scalars(a)
    set_kv_pos(a, 16)
    setup_rest(a)
    pair(1)
    stamp(a, 1)
    a.vm_wait([("p", 0)]); a("s_barrier")
    stamp(a, 2)
    run(xreads(a, 0, XR))
    pair(2)
    kvs = list(range(16, 18 + A))
    sched = {5: kvs[:3], 6: kvs[3:5], 7: kvs[5:]}
    for u in range(8):
        if u in (2, 5): stamp(a, {2: 3, 5: 4}[u])
        if u < 7: a.vm_wait([("p", u+1)], also_lgkm0=True)
        else: a.lgkm0()
        a("s_barrier")
        if u < 7: run(xreads(a, u+1, XR + 16*(u+1)))
        if u + 3 < 8: pair(u + 3)
        else:
            for n in sched[u]: run(dma_kv(a, n))
    stamp(a, 7)
    a.vm_wait([16, 17])
    stamp(a, 8)
    a("s_barrier")

def lane_fix(a, regs4):
    for r in regs4:
        a(f"v_permlane32_swap_b32 v{r}, v{r+2}"); a(f"v_permlane32_swap_b32 v{r+1}, v{r+3}")
    a("s_nop 1")
    for r in regs4:
        a(f"v_permlane16_swap_b32 v{r}, v{r+2}"); a(f"v_permlane16_swap_b32 v{r+1}, v{r+3}")
def scale_pack_q(a, mid=None):
    for i0 in range(0, 64, 8):
        if cfg.pk_q:
            for i in range(i0, i0 + 8, 2): a(f"v_pk_mul_f32 {vr(OACC+i,2)}, {vr(OACC+i,2)}, {sr(S_SC,2)} op_sel_hi:[1,0]")
        else:
            for i in range(i0, i0 + 8): a(f"v_mul_f32 v{OACC+i}, s{S_SC}, v{OACC+i}")
        for i in range(i0, i0 + 8, 2): a(f"v_cvt_pk_bf16_f32 v{QF+i//2}, v{OACC+i}, v{OACC+i+1}")
    if mid: mid()
    a("s_nop 1")
    lane_fix(a, [QF + 4*i for i in range(8)])
    a("s_nop 1")

def head_prologue(a):
    zs = [lambda i=i: a(f"v_mov_b64 {vr(OACC+i,2)}, 0") for i in range(0, 64, 2)] if cfg.mov64 else [lambda i=i: a(f"v_mov_b32 v{OACC+i}, 0") for i in range(64)]
    interleave(a, qk_mfmas(a, SB[0], False), spread(16, (zs, 0, 16)))
    a(f"v_mov_b32 v{LS}, 0"); a(f"v_mov_b32 v{LS+1}, 0")
    run(kreads(a, 1))
    for qb in range(2):
        run(maxn(a, MX, SB[0] + 8*qb, 8))
        xreduce(a, MX, T1, "v_max_f32")
        for i in range(8): a(f"v_sub_f32 v{SB[0]+8*qb+i}, v{SB[0]+8*qb+i}, v{MX}")
        for i in range(4): a(f"v_sub_f32 v{NEGM+4*qb+i}, 0, v{MX}")

def attention_loop(a):
    A = cfg.ahead
    assert A <= 5 and va_base[0] == 0
    W = 2*(A-2)
    a("s_setprio 2")
    a(f"s_mov_b32 s{S_CNT}, 8")
    S_MSK = S_T2
    if cfg.stag:
        rev = lambda m: sum(1 << (7 - i) for i in range(8) if m >> i & 1)
        w0 = sum(rev(cfg.stag[c][0]) << (8*c) for c in range(4)); w1 = sum(rev(cfg.stag[c][1]) << (8*c) for c in range(4))
        a(f"s_mov_b32 s{S_MSK}, {w0:#x}"); a(f"s_cmp_eq_u32 s{S_GRP}, 0"); a(f"s_cselect_b32 s{S_MSK}, s{S_MSK}, {w1:#x}")
        a(f"s_and_b32 s{S_T0}, s{S_B}, 3"); a(f"s_lshl_b32 s{S_T0}, s{S_T0}, 3"); a(f"s_lshr_b32 s{S_MSK}, s{S_MSK}, s{S_T0}"); a(f"s_lshl_b32 s{S_MSK}, s{S_MSK}, 1")
        a(f"s_bitcmp1_b32 s{S_MSK}, s{S_CNT}"); a("s_cbranch_scc1 L_loop2")
    a.raw(".p2align 3")
    a.label("L_loop")
    for j in range(3): body(a, j, [18 + 2*j + A, 19 + 2*j + A], W)
    a(f"s_cmp_eq_u32 s{S_CNT}, 1"); a("s_cbranch_scc1 L_last")
    body(a, 3, [24 + A, 25 + A], W)
    a(f"s_sub_u32 s{S_CNT}, s{S_CNT}, 1")
    if cfg.stag:
        a(f"s_bitcmp1_b32 s{S_MSK}, s{S_CNT}"); a("s_cbranch_scc0 L_loop")
        a.raw(".p2align 3")
        a.label("L_loop2")
        for j in range(3): body(a, j, [18 + 2*j + A, 19 + 2*j + A], W, dp=0)
        a(f"s_cmp_eq_u32 s{S_CNT}, 1"); a("s_cbranch_scc1 L_last")
        body(a, 3, [24 + A, 25 + A], W, dp=0)
        a(f"s_sub_u32 s{S_CNT}, s{S_CNT}, 1")
        a(f"s_bitcmp1_b32 s{S_MSK}, s{S_CNT}"); a("s_cbranch_scc1 L_loop2")
    a("s_branch L_loop")
    a.label("L_last")
    body(a, 3, [24 + A, 25 + A], W, do_qk=False)

mode_id = [0]
def by_mode(a, emit):
    mode_id[0] += 1; i = mode_id[0]
    vm, n = list(a.vm), a.nvm
    a(f"s_cmp_eq_u32 s{S_MODE}, 0"); a(f"s_cbranch_scc1 L_far{i}")
    emit(""); a(f"s_branch L_near{i}")
    a.vm, a.nvm = vm, n
    a.label(f"L_far{i}"); emit(" sc1"); a.label(f"L_near{i}")
def o_stores(a, dst):
    def emit(fl):
        a(f"s_movk_i32 s{S_T0}, 4096")
        for f in range(8):
            so = "0" if f < 4 else f"s{S_T0}"
            a.vmem(f"buffer_store_dwordx4 {vr(dst+4*f,4)}, v{VOST}, {sr(S_O,4)}, {so} offen offset:{(f%4)*1024}{fl}", "ost")
    by_mode(a, emit)
def o_flag(a):
    a("s_mov_b64 exec, 1")
    by_mode(a, lambda fl: a.vmem(f"buffer_store_dwordx2 {vr(VFL,2)}, v{VZ}, {sr(S_F,4)}, s{S_FOFF} offen{fl}", "flag"))
    a("s_mov_b64 exec, -1")
def id_publish(a):
    a(f"s_getreg_b32 s{S_T1}, hwreg(HW_REG_XCC_ID, 0, 4)")
    a(f"s_add_u32 s{S_T1}, s{S_T1}, s{S_N1}")
    a(f"v_mov_b32 v{T2}, s{S_N0}"); a(f"v_mov_b32 v{T3}, s{S_T1}")
    a(f"s_lshl_b32 s{S_T0}, s{S_NB}, 7"); a(f"s_add_u32 s{S_T0}, s{S_T0}, s{S_IOFF}")
    a(f"s_cmp_eq_u32 s{S_WV}, 0"); a("s_cbranch_scc0 L_noid")
    a("s_mov_b64 exec, 1")
    a(f"buffer_store_dwordx2 {vr(T2,2)}, v{VZ}, {sr(S_F,4)}, s{S_T0} offen sc1")
    a("s_mov_b64 exec, -1")
    a.label("L_noid")
def id_load(a, vaddr):
    a(f"v_and_b32 v{vaddr}, 3, v{LANE}"); a(f"v_lshlrev_b32 v{vaddr}, 7, v{vaddr}")
    a.vmem(f"buffer_load_dwordx2 {vr(T2,2)}, v{vaddr}, {sr(S_F,4)}, s{S_IOFF} offen sc1", "id")
def id_check(a):
    a(f"s_getreg_b32 s{S_T1}, hwreg(HW_REG_XCC_ID, 0, 4)")
    a(f"s_add_u32 s{S_T1}, s{S_T1}, s{S_N1}")
    a(f"v_cmp_ne_u32 vcc, s{S_N0}, v{T2}")
    a(f"v_cmp_ne_u32 s[4:5], s{S_T1}, v{T3}")
    a("s_or_b64 vcc, vcc, s[4:5]")
    a(f"s_cselect_b32 s{S_MODE}, 0, {1 if cfg.local else 0}")
def o_pack(a, dst):
    xreduce(a, LS, T1, "v_add_f32"); xreduce(a, LS+1, T1, "v_add_f32")
    a(f"v_rcp_f32 v{LS}, v{LS}"); a(f"v_rcp_f32 v{LS+1}, v{LS+1}")
    a("s_nop 0")
    for ks in range(4):
        for qb in range(2):
            s = OACC + 32*qb + 8*ks; f = 2*ks + qb
            if cfg.pk_o:
                for i in range(0, 8, 2): a(f"v_pk_mul_f32 {vr(s+i,2)}, {vr(s+i,2)}, {vr(LS,2)} op_sel:[0,{qb}] op_sel_hi:[1,{qb}]")
            else:
                for i in range(8): a(f"v_mul_f32 v{s+i}, v{s+i}, v{LS+qb}")
            for i in range(4): a(f"v_cvt_pk_bf16_f32 v{dst+4*f+i}, v{s+2*i}, v{s+2*i+1}")

def build_dbg_srd(a):
    d = S_D
    a(f"s_mov_b32 s{d}, s26"); a(f"s_mov_b32 s{d+1}, s27"); a(f"s_mov_b32 s{d+2}, 256"); a(f"s_mov_b32 s{d+3}, 0x20000")
def claim_a(a):
    a(f"s_mov_b32 s{S_T0}, {EP_OFF}")
    a(f"buffer_load_dword v{VFL}, v{VZ}, {sr(S_F,4)}, s{S_T0} offen sc1")
def claim_b(a):
    a(f"v_readfirstlane_b32 s{S_N0}, v{VFL}")
    a("s_nop 0")
    a(f"s_add_u32 s{S_N0}, s{S_N0}, 1")
    a(f"s_max_u32 s{S_N0}, s{S_N0}, 1")
    a(f"v_mov_b32 v{VFL}, s{S_N0}"); a(f"v_mov_b32 v{VFL+1}, 0")
    a("s_mov_b64 exec, 1")
    a(f"buffer_atomic_cmpswap {vr(VFL,2)}, v{VZ}, {sr(S_D,4)}, 0 offen sc0 sc1")
    a("s_mov_b64 exec, -1")
def claim_c(a, tag):
    a(f"v_readfirstlane_b32 s{S_T1}, v{VFL}")
    a("s_nop 0")
    a(f"s_cmp_eq_u32 s{S_T1}, 0")
    a(f"s_cbranch_scc0 L_lost{tag}")
    a(f"v_mov_b32 v{VFL}, s{S_N0}")
    a(f"s_mov_b32 s{S_T0}, {EP_OFF}")
    a("s_mov_b64 exec, 1")
    a(f"buffer_store_dword v{VFL}, v{VZ}, {sr(S_F,4)}, s{S_T0} offen sc1")
    a("s_mov_b64 exec, -1")
    a(f"s_branch L_got{tag}")
    a.label(f"L_lost{tag}")
    a(f"s_mov_b32 s{S_N0}, s{S_T1}")
    a.label(f"L_got{tag}")
def nonce_load(a):
    a.vmem(f"buffer_load_dword v{VNON}, v{VZ}, {sr(S_D,4)}, 0 offen sc1", "non")
def get_nonce(a, tag):
    a(f"v_readfirstlane_b32 s{S_N0}, v{VNON}")
    a("s_nop 0")
    a(f"s_cmp_lg_u32 s{S_N0}, 0")
    a(f"s_cbranch_scc1 L_havenonce{tag}")
    claim_a(a); a("s_waitcnt vmcnt(0)"); claim_b(a); a("s_waitcnt vmcnt(0)"); claim_c(a, tag)
    a.label(f"L_havenonce{tag}")
    a(f"s_xor_b32 s{S_N1}, s{S_N0}, {TAGX}")
    a(f"v_mov_b32 v{VFL}, s{S_N0}"); a(f"v_mov_b32 v{VFL+1}, s{S_N1}")
def flag_store(a, soff):
    a("s_mov_b64 exec, 1")
    a.vmem(f"buffer_store_dwordx2 {vr(VFL,2)}, v{VZ}, {sr(S_F,4)}, s{soff} offen sc1", "flag")
    a("s_mov_b64 exec, -1")
def poll_issue(a, soff, vaddr):
    a.vmem(f"buffer_load_dwordx2 {vr(T2,2)}, v{vaddr}, {sr(S_F,4)}, s{soff} offen sc1", "poll")
def poll_check(a, done_label):
    a(f"v_cmp_ne_u32 vcc, s{S_N0}, v{T2}")
    a(f"v_cmp_ne_u32 s[4:5], s{S_N1}, v{T3}")
    a("s_or_b64 vcc, vcc, s[4:5]")
    a(f"s_cbranch_scc0 {done_label}")
def poll(a, tag, soff, vaddr):
    a(f"s_mov_b32 s{S_T1}, 0x200000")
    a("s_mov_b64 exec, 15")
    a.label(f"L_poll{tag}")
    a(f"buffer_load_dwordx2 {vr(T2,2)}, v{vaddr}, {sr(S_F,4)}, s{soff} offen sc1")
    a("s_waitcnt vmcnt(0)")
    poll_check(a, f"L_polld{tag}")
    a(f"s_sleep {cfg.slp}")
    a(f"s_sub_u32 s{S_T1}, s{S_T1}, 1")
    a(f"s_cmp_lg_u32 s{S_T1}, 0")
    a(f"s_cbranch_scc1 L_poll{tag}")
    a("s_branch L_end")
    a.label(f"L_polld{tag}")
    a("s_mov_b64 exec, -1")

def tick(a, tags=()):
    a.vm_wait(tags, also_lgkm0=True)
    a("s_barrier")
    trace(a)

S_WO = 4
S_WO = 8
VWO0, VWO1 = 16, 17
def wo_setup(a, v0, v1):
    a(f"s_lshl_b32 s{S_T0}, s{S_NB}, 8"); srd(a, S_WO, 12, S_T0, 0); a(f"s_sub_u32 s{S_WO+2}, {4096*1024}, s{S_T0}")
    a(f"v_lshrrev_b32 v{v0}, 4, v{LANE}")
    a(f"v_mul_u32_u24 v{v0}, 768, v{v0}")
    a(f"v_add_u32 v{v0}, v{VOV0}, v{v0}")
    a(f"s_lshl_b32 s{S_T0}, s{S_WV}, 13")
    a(f"v_add_u32 v{v0}, s{S_T0}, v{v0}")
    a(f"v_xor_b32 v{v1}, 0x80, v{v0}")
def headoff(a, pos, phase, dst, sh):
    a(f"s_add_u32 s{dst}, s{S_NB}, {pos}"); a(f"s_and_b32 s{dst}, s{dst}, 3"); a(f"s_lshl_b32 s{dst}, s{dst}, 1")
    a(f"s_lshl_b32 s{S_T1}, s{S_XQ}, 3"); a(f"s_add_u32 s{dst}, s{dst}, s{S_T1}")
    if phase: a(f"s_add_u32 s{dst}, s{dst}, 1")
    a(f"s_lshl_b32 s{dst}, s{dst}, {sh}")
SEQ = [(0, 0), (0, 1), (0, 2), (0, 3), (1, 0), (1, 1), (1, 2), (1, 3)]
GRP_LDS = [WB + 32768, WB + 65536, WB, 32768, WB + 32768, WB + 65536, WB, 32768]
def wo_lds(g): return GRP_LDS[g >> 2] + (g & 3) * 8192
def wo_issue(a, g, v0, v1):
    ph, pos = SEQ[g >> 2]
    headoff(a, pos, ph, S_T3, 17)
    for k in range(2):
        a(f"s_add_u32 m0, s{S_W2K}, {wo_lds(g) + k*1024}")
        a(f"s_add_u32 s{S_T0}, s{S_T3}, {(32*(g&3) + k*4)*1024}")
        a.vmem(f"buffer_load_dwordx4 v{v1 if k else v0}, {sr(S_WO,4)}, s{S_T0} offen lds", ("wo", g))

def pace(nslots, t0, t1):
    n = 2 * nslots; T = t1 - t0
    out = {}
    for h in range(n):
        out.setdefault(t0 + (h * T) // n, []).append((h >> 1, h & 1))
    return out

def g1_aux_r1(a):
    A = cfg.ahead
    a("s_setprio 0")
    build_dbg_srd(a)
    a(f"s_add_u32 s{S_W}, s{S_W}, 256"); a(f"s_addc_u32 s{S_W+1}, s{S_W+1}, 0"); a(f"s_sub_u32 s{S_W+2}, s{S_W+2}, 256")
    wo_setup(a, VWO0, VWO1)
    def w2(v):
        kc(a, v >> 1, S_T2, 19)
        for k in range(2):
            a(f"s_add_u32 m0, s{S_WB}, {(v%4)*8192 + k*1024}")
            a(f"s_add_u32 s{S_T0}, s{S_T2}, {((v&1)*32 + k*4)*8192}")
            a.vmem(f"buffer_load_dwordx4 v{VOW1 if k else VOW0}, {sr(S_W,4)}, s{S_T0} offen lds", ("w2", v))
    mark = [None]
    def claimer(part, t):
        a(f"s_cmp_eq_u32 s{S_CL}, 0"); a(f"s_cbranch_scc0 L_nc{t}")
        if mark[0] is not None: a(f"s_waitcnt vmcnt({a.nvm - mark[0]})")
        part(); a.label(f"L_nc{t}")
        mark[0] = a.nvm
    plan = {}
    h = 0
    for t in range(cfg.q2_t0, 30):
        for _ in range(2 if t in cfg.q2_dbl else 1):
            if h < 32: plan.setdefault(t, []).append((h >> 1, h & 1)); h += 1
    assert h == 32
    first_tick = {v: t for t, l in plan.items() for v, h in l if h == 0}
    issue = {}
    for v in range(16):
        issue.setdefault(min(v, 2) if v < 4 else first_tick[v-4] + 1, []).append(v)
    wo_t = {t: g for g, t in enumerate(cfg.wo_ticks)}
    touch_t = {t: k for k, t in enumerate(cfg.tch_ticks)} if (cfg.touch and cfg.wt2 != 1) else {}
    assert first_tick[13] + 1 < 27
    dummy = lambda t: (XR, 'touch') if t < 27 else (224, 'late')
    ot = {}
    S_OT = 88
    if cfg.otouch:
        n = 16 if cfg.otouch == 1 else 8
        for k in range(n): ot.setdefault(cfg.ot_t[0] + (k * (cfg.ot_t[1] - cfg.ot_t[0])) // n, []).append(k if cfg.otouch != 3 else k + 8)
        a(f"s_movk_i32 s{S_OFFK}, 4096")
        a(f"s_sub_u32 s{S_OT}, s{S_O}, {1024*(8192+cfg.opad)}"); a(f"s_subb_u32 s{S_OT+1}, s{S_O+1}, 0"); a(f"s_mov_b32 s{S_OT+2}, 8192"); a(f"s_mov_b32 s{S_OT+3}, 0x20000")
    for t in range(32):
        a.c(f"G1 tick {t}")
        tags = [n for n in range(16, 20 + 2*t)]
        tags += [("w2", v) for v, h in plan.get(t, []) if h == 0]
        if t == 17: tags.append("non")
        if t == 30: tags += ["touch"]
        if t == 31: tags += [("wo", g) for g in range(8)] + ["id"]
        tick(a, tags)
        for v in issue.get(t, []): w2(v)
        if t in wo_t: wo_issue(a, wo_t[t], VWO0, VWO1)
        if t in touch_t:
            k = touch_t[t]
            a(f"s_lshr_b32 s{S_T3}, s{S_B}, 1"); a(f"s_lshl_b32 s{S_T1}, s{S_XQ}, 2"); a(f"s_add_u32 s{S_T3}, s{S_T3}, s{S_T1}")
            a(f"s_lshl_b32 s{S_T3}, s{S_T3}, 2"); a(f"s_and_b32 s{S_T1}, s{S_B}, 1"); a(f"s_add_u32 s{S_T3}, s{S_T3}, s{S_T1}")
            a(f"s_lshl_b32 s{S_T3}, s{S_T3}, 16"); a(f"s_add_u32 s{S_T3}, s{S_T3}, {(128 + 32*(k>>1) + 4*(k&1))*1024}")
            a.vmem(f"buffer_load_dwordx4 {vr(dummy(t)[0],4)}, v{VWO0}, {sr(S_WO,4)}, s{S_T3} offen", dummy(t)[1])
        for k in ot.get(t, []):
            a.vmem(f"buffer_load_dwordx4 {vr(dummy(t)[0],4)}, v{VOST}, {sr(S_O if k < 8 else S_OT,4)}, {'0' if (k & 7) < 4 else 's%d' % S_OFFK} offen offset:{(k%4)*1024}", dummy(t)[1])
        if t == 0: claimer(lambda: claim_a(a), t)
        if t == 4: claimer(lambda: claim_b(a), t)
        if t == 9: claimer(lambda: claim_c(a, "e"), t)
        for v, h in plan.get(t, []):
            if cfg.x_noq2 and v > 1: continue
            if h == 0: run(trreads(a, WB + (v % 4) * 8192, VF))
            run(acc_mfmas(a, VF, XR + 8*v, first=(v == 0), qbs=(h,)))
        if t == 14: nonce_load(a)
        if t == 17: get_nonce(a, "g"); id_publish(a)
        if t == 28: id_load(a, MX)
        if t == 30:
            a("s_nop 5")
            run(kreads(a, 79 % 8))
            scale_pack_q(a)
            set_va(a, 0)
        if t == 31: id_check(a)
    set_kv_pos(a, 18 + 64 + A)

VPOLL = 12
BUF_OF = [0, 1, 2, 0, 1, 2, 0, 1]
AB = [VF, KF]
def oload_ops(a, e, S_OO):
    ph, pos = SEQ[e]; buf = BUF_OF[e]
    def op(k):
        if k == 0:
            a(f"s_add_u32 s{S_THR}, s{S_NB}, {pos}"); a(f"s_and_b32 s{S_THR}, s{S_THR}, 3"); a(f"s_mul_i32 s{S_THR}, s{S_THR}, {8192 + cfg.opad}")
        if k == 4: a(f"s_add_u32 s{S_THR}, s{S_THR}, 4096")
        a.vmem(f"buffer_load_dwordx4 {vr(OB[buf]+4*k,4)}, v{VOST}, {sr(S_OO,4)}, s{S_THR} offen offset:{(k%4)*1024}{cfg.ofl}", ("o", 4*e + (k >> 1)))
    return [lambda k=k: op(k) for k in range(8)]
def oloads(a, e, S_OO): run(oload_ops(a, e, S_OO))
def entry(a, e, nxt_e=None, extra=None, first=False):
    for ks in range(4):
        g = 4*e + ks
        a.vm_wait([("o", g)])
        ng = g + 1 if ks < 3 else (4*nxt_e if nxt_e is not None else None)
        nxt = trreads(a, wo_lds(ng), AB[(ks + 1) & 1]) if ng is not None else []
        ex = extra.get(ks, []) if extra else []
        lists = ([(nxt, 0, cfg.e_spread)] if nxt else []) + ([(ex, 0, 16)] if ex else [])
        interleave(a, acc_mfmas(a, AB[ks & 1], OB[BUF_OF[e]] + 8*ks, first=(first and ks == 0), bneed=True, qb_outer=False, wgrp=cfg.e_wait), spread(16, *lists))
def slot(a, g, ng=None, ex=()):
    a.vm_wait([("o", g)])
    nxt = trreads(a, wo_lds(ng), AB[(g + 1) & 1]) if ng is not None else []
    lists = ([(nxt, 0, cfg.e_spread)] if nxt else []) + ([(list(ex), 0, 16)] if ex else [])
    interleave(a, acc_mfmas(a, AB[g & 1], OB[BUF_OF[g >> 2]] + 8*(g & 3), bneed=True, qb_outer=False, wgrp=cfg.e_wait), spread(16, *lists))
def oproj_setup(a, S_OO):
    a(f"v_and_b32 v{VPOLL}, 3, v{LANE}"); a(f"v_lshlrev_b32 v{VPOLL}, {cfg.fsh}, v{VPOLL}")
    a(f"s_mul_i32 s{S_T0}, s{S_NB}, {8192 + cfg.opad}")
    a(f"s_sub_u32 s{S_OO}, s{S_O}, s{S_T0}"); a(f"s_subb_u32 s{S_OO+1}, s{S_O+1}, 0"); a(f"s_mov_b32 s{S_OO+2}, {4*(8192 + cfg.opad)}"); a(f"s_mov_b32 s{S_OO+3}, 0x20000")
def va_rotate(a):
    a(f"s_lshl_b32 s{S_T0}, s{S_XQ}, 6")
    for d in range(8): a(f"v_xor_b32 v{VA+d}, s{S_T0}, v{VA+d}")
def acc_lds(k):
    return 32768 + (k >> 1) * 8192 + (k & 1) * 1024

S_P = S_V; S_OUT = S_O; VOUT = 13
S_PS = S_CNT; S_PD = S_OFFV
def psetup(a):
    a(f"s_add_u32 s{S_T2}, s{S_GID}, s{S_NB}")
    a(f"s_lshl_b32 s{S_T0}, s{S_T2}, 18"); a(f"s_add_u32 s{S_T0}, s{S_T0}, {WS_P}"); srd(a, S_P, 28, S_T0, 262144)
    a(f"s_lshl_b32 s{S_T3}, s{S_WV}, 12")
    a(f"s_lshl_b32 s{S_PS}, s{S_XQ}, 14"); a(f"s_add_u32 s{S_PS}, s{S_PS}, s{S_T3}")
    a(f"s_lshl_b32 s{S_PD}, s{S_XQ}, 16"); a(f"s_add_u32 s{S_PD}, s{S_PD}, s{S_T3}")
    a(f"s_lshl_b32 s{S_T1}, s{S_B}, 2"); a(f"s_add_u32 s{S_T1}, s{S_T1}, s{S_WV}"); a(f"s_lshl_b32 s{S_T1}, s{S_T1}, 16")
    a(f"s_lshl_b32 s{S_T0}, s{S_BR}, 10"); a(f"s_add_u32 s{S_T1}, s{S_T1}, s{S_T0}")
    a(f"s_lshl_b32 s{S_T0}, s{S_NB}, 8"); a(f"s_add_u32 s{S_T1}, s{S_T1}, s{S_T0}")
    a(f"s_lshl_b32 s{S_T0}, s{S_XQ}, 6"); a(f"s_add_u32 s{S_T1}, s{S_T1}, s{S_T0}")
    srd(a, S_OUT, 24, S_T1, 0); a(f"s_sub_u32 s{S_OUT+2}, {8*128*2048}, s{S_T1}")
    a(f"v_and_b32 v{T2}, 15, v{LANE}"); a(f"v_lshlrev_b32 v{VOUT}, 11, v{T2}")
    a(f"v_lshrrev_b32 v{T2}, 4, v{LANE}"); a(f"v_lshl_add_u32 v{VOUT}, v{T2}, 4, v{VOUT}")

def g0_aux_r2(a):
    A = cfg.ahead
    S_OO = S_K
    last = 17 + 64 + A
    a.vm = []
    for n in range(last - A + 1, last + 1): a.vm += [n, n]
    a("s_setprio 0")
    TB = cfg.t_pub; TP = cfg.t_poll
    assert TB + 2 <= TP - 2 and TP <= 63 and TB >= 50
    plan = pace(4, 34, 50)
    first_tick = {g: t for t, l in plan.items() for g, h in l if h == 0}
    refill = {}
    for g in range(8, 12): refill[33 + 4*(g - 8)] = g
    for g in range(16, 20): refill[first_tick[g - 16] + 1] = g
    assert len(refill) == 8
    for t in range(32, 64):
        a.c(f"G0 tick {t}")
        tags = [n for n in range(16, 20 + 2*t)]
        if t == 40: tags += ["non", "id"]
        if t == 54: tags += ["touch"] + [("wo", g) for g in range(20)]
        if t == TB + 2: tags.append("ost")
        if t == TP: tags.append("poll")
        if t == cfg.t_con: tags += [("o", g) for g in range(4, 16)]
        tick(a, tags)
        if t == 32:
            build_dbg_srd(a)
            o_pack(a, OB[0])
            wo_setup(a, VOW0, VOW1)
            va_rotate(a)
            oproj_setup(a, S_OO)
        if t == 50 and cfg.touch:
            headoff(a, 3, 0, S_T3, 17)
            a(f"s_lshr_b32 s{S_T1}, s{S_B}, 1"); a(f"s_lshl_b32 s{S_T1}, s{S_T1}, 15"); a(f"s_add_u32 s{S_T3}, s{S_T3}, s{S_T1}")
            a(f"s_and_b32 s{S_T1}, s{S_B}, 1"); a(f"s_lshl_b32 s{S_T1}, s{S_T1}, 12"); a(f"s_add_u32 s{S_T3}, s{S_T3}, s{S_T1}")
            a.vmem(f"buffer_load_dwordx4 {vr(240,4)}, v{VOW0}, {sr(S_WO,4)}, s{S_T3} offen", "touch")
        if cfg.wt2 and t in (44, 46, 48, 51):
            k = (44, 46, 48, 51).index(t)
            a(f"s_lshr_b32 s{S_T3}, s{S_B}, 1"); a(f"s_lshl_b32 s{S_T1}, s{S_XQ}, 2"); a(f"s_add_u32 s{S_T3}, s{S_T3}, s{S_T1}")
            a(f"s_lshl_b32 s{S_T3}, s{S_T3}, 2"); a(f"s_and_b32 s{S_T1}, s{S_B}, 1"); a(f"s_add_u32 s{S_T3}, s{S_T3}, s{S_T1}")
            a(f"s_lshl_b32 s{S_T3}, s{S_T3}, 16"); a(f"s_add_u32 s{S_T3}, s{S_T3}, {(128 + 32*(k>>1) + 4*(k&1))*1024}")
            a.vmem(f"buffer_load_dwordx4 {vr(240,4)}, v{VOW0}, {sr(S_WO,4)}, s{S_T3} offen", "touch")
        if t == 36: nonce_load(a); id_load(a, MX)
        if t == 40: get_nonce(a, "h"); id_check(a)
        if t == TB: o_stores(a, OB[0])
        if t == TB + 1: psetup(a)
        if t == TB + 2: o_flag(a); stamp(a, 7)
        if t == TP - 2: poll_issue(a, S_POFF, VPOLL)
        if t == TP:
            poll_check(a, "L_polldo1")
            poll(a, "o1", S_POFF, VPOLL)
            stamp(a, 1)
        for e in (1, 2, 3):
            if t == TP + cfg.o_ticks[e-1]: oloads(a, e, S_OO)
        if t == cfg.t_con:
            a(f"s_add_u32 s{S_FOFF}, s{S_FOFF}, {FC_OFF}"); a(f"s_add_u32 s{S_POFF}, s{S_POFF}, {FC_OFF}")
            o_flag(a)
        if t in refill: wo_issue(a, refill[t], VOW0, VOW1)
        for g, h in plan.get(t, []):
            if h == 0: run(trreads(a, wo_lds(g), VF))
            run(acc_mfmas(a, VF, OB[0] + 8*(g & 3), first=(g == 0), qbs=(h,)))
        if t == 62:
            run(trreads(a, wo_lds(4), AB[0]))
            for g in range(4, 4 + cfg.pre62): slot(a, g, g + 1)
    assert A <= 4 and cfg.t_con <= 63
    for g in range(12, 16): wo_issue(a, g, VOW0, VOW1)
    poll_issue(a, S_POFF, VPOLL)
    a(f"v_add_u32 v{T1}, s{S_W2K}, v{VOST}")
    a(f"s_setprio {cfg.g0prio}")
    hd = [lambda k=k: a.ds(f"ds_read_b128 {vr(OB[BUF_OF[4]]+4*k,4)}, v{T1} offset:{(k>>1)*8192 + (k&1)*1024}", rng(OB[BUF_OF[4]]+4*k, 4)) for k in range(8)]
    Z1 = cfg.z1_after; Z2 = Z1 + 4
    assert 8 <= Z1 <= 11
    for g in range(4 + cfg.pre62, 16):
        if g == Z1:
            a.vm_wait(["poll"])
            poll_check(a, "L_polldc")
            poll(a, "c", S_POFF, VPOLL)
            a("s_barrier")
            stamp(a, 8)
            a(f"s_setprio {cfg.g0tp}")
        if g == Z2 and not cfg.merge:
            a("s_barrier")
        n = 16 - Z2
        slot(a, g, g + 1, hd[(g - Z2)*8//n:(g - Z2 + 1)*8//n] if (g >= Z2 and not cfg.merge) else ())
    stamp(a, 9)
    a("s_barrier")
    stamp(a, 2); cstamp(a, 1)
    if cfg.merge: run(hd)
    o5 = oload_ops(a, 5, S_OO); o6 = oload_ops(a, 6, S_OO); o7 = oload_ops(a, 7, S_OO)
    accq = lambda d, k: OACC + 32*(k >> 1) + 8*d + 4*(k & 1)
    pkq = {1: [KF, KF+4, KF+8], 2: [KF+12, KF+16, KF+20], 3: [KF+24, KF+28, accq(1, 0)]}
    rkq = {1: [accq(1, 1), accq(1, 2), accq(1, 3)], 2: [accq(2, 0), accq(2, 1), accq(2, 2)], 3: [accq(3, 0), accq(3, 1), accq(3, 2)]}
    AW = [0, 1, 2, 3]
    steps = [(d, e, ks) for d in (1, 2, 3, 0) for e in (5, 6, 7) for ks in range(4)]
    NB_ = 4
    def sreads(i):
        d, e, ks = steps[i]
        ad = wo_lds(4*e + ks); win = ad >> 16
        ops = []
        def addr():
            for j in range(2):
                a(f"v_add_u32 v{AW[j]}, 0x10000, v{VA+2*d+j}"); a(f"v_add_u32 v{AW[2+j]}, 0x20000, v{VA+2*d+j}")
        for j in range(2):
            for p in range(2):
                r = VF + 8*(i % NB_) + 4*j + 2*p
                reg = VA + 2*d + j if win == 0 else AW[2*(win-1) + j]
                def op(r=r, reg=reg, p=p, first=(j == 0 and p == 0 and e == 5 and ks == 0)):
                    if first: addr()
                    a.ds(f"ds_read_b64_tr_b16 {vr(r,2)}, v{reg} offset:{(ad & 0xffff) + p*4096}", rng(r, 2))
                ops.append(op)
        return ops
    def publish(d):
        ops = []
        for k in range(3):
            q = pkq[d][k]
            ops.append(lambda q=q: a(f"v_mov_b32 v{q+3}, s{S_N0}"))
            for i in range(3*k, min(8, 3*k+3)):
                src = OACC + 32*(i >> 2) + 8*d + 2*(i & 3)
                ops.append(lambda q=q, i=i, src=src: a(f"v_cvt_pk_bf16_f32 v{q + i % 3}, v{src}, v{src+1}"))
            if k == 2: ops.append(lambda q=q: a(f"v_mov_b32 v{q+2}, s{S_N1}"))
            def st(q=q, k=k):
                if k == 0: a(f"s_xor_b32 s{S_T0}, s{S_XQ}, {d}"); a(f"s_lshl_b32 s{S_T0}, s{S_T0}, 16"); a(f"s_add_u32 s{S_T0}, s{S_T0}, s{S_PS}")
                a.vmem(f"buffer_store_dwordx4 {vr(q,4)}, v{VOST}, {sr(S_P,4)}, s{S_T0} offen offset:{k*1024} sc1", ("pst", d))
            ops.append(st)
        return ops
    def ploads(d):
        a(f"s_xor_b32 s{S_T0}, s{S_XQ}, {d}"); a(f"s_lshl_b32 s{S_T0}, s{S_T0}, 14"); a(f"s_add_u32 s{S_T0}, s{S_T0}, s{S_PD}")
        for k in range(3): a.vmem(f"buffer_load_dwordx4 {vr(rkq[d][k],4)}, v{VOST}, {sr(S_P,4)}, s{S_T0} offen offset:{k*1024} sc1", ("pld", d))
    slot(a, 16, 17, o5[:4]); slot(a, 17, 18, o5[4:]); slot(a, 18, 19, o6[:4])
    slot(a, 19, None, [lambda: set_va(a, 0)] + o6[4:] + sreads(0) + sreads(1) + sreads(2))
    cstamp(a, 6); cstamp(a, 5); stamp(a, 7)
    pend = []
    for i, (d, e, ks) in enumerate(steps):
        if i == 0: pend = [x for o in o7 for x in (o, lambda: None)]
        if i == (4 if cfg.merge else 8) - (NB_ - 1): a("s_barrier")
        if i % 12 == 2 and i > 12: pend = publish(steps[i - 12][0])
        a.vm_wait([("o", 4*e + ks)])
        nxt = sreads(i + NB_ - 1) if i + NB_ - 1 < len(steps) else []
        for m in range(4):
            j, qb = m >> 1, m & 1
            f = VF + 8*(i % NB_) + 4*j
            if m == 0: a.need(rng(VF + 8*(i % NB_), 8))
            acc = OACC + 32*qb + 4*(2*d + j)
            a(f"{MFMA} {vr(acc,4)}, {vr(f,4)}, {vr(OB[BUF_OF[e]] + 8*ks + 4*qb,4)}, {vr(acc,4)}")
            if nxt: nxt[m]()
            if pend: pend.pop(0)()
    assert not pend
    stamp(a, 3); cstamp(a, 11)
    a(f"s_mov_b32 s{S_T1}, 0x200000")
    ploads(1); ploads(2)
    a.vm_wait([("pst", 3)])
    ploads(3)
    a.label("L_pp")
    a("s_waitcnt vmcnt(0)")
    qs = [q for d in (1, 2, 3) for q in rkq[d]]
    a(f"v_xor_b32 v{T1}, s{S_N0}, v{qs[0]+3}")
    for q in qs[1:]:
        a(f"v_xor_b32 v{T2}, s{S_N0}, v{q+3}"); a(f"v_or_b32 v{T1}, v{T1}, v{T2}")
    for d in (1, 2, 3):
        a(f"v_xor_b32 v{T2}, s{S_N1}, v{rkq[d][2]+2}"); a(f"v_or_b32 v{T1}, v{T1}, v{T2}")
    a(f"v_cmp_ne_u32 vcc, 0, v{T1}")
    a("s_cbranch_vccz L_ppd")
    a(f"s_sleep {cfg.slp}")
    for d in (1, 2, 3): ploads(d)
    a(f"s_sub_u32 s{S_T1}, s{S_T1}, 1"); a(f"s_cmp_lg_u32 s{S_T1}, 0"); a("s_cbranch_scc1 L_pp")
    a("s_branch L_end")
    a.label("L_ppd")
    stamp(a, 4)
    a(f"s_mov_b32 s{S_T0}, 0x8000")
    for d in range(1, 4):
        for i in range(8):
            p = rkq[d][i // 3] + i % 3; o = OACC + 32*(i >> 2) + 2*(i & 3)
            a(f"v_lshlrev_b32 v{T1}, 16, v{p}")
            a(f"v_and_b32 v{T2}, 0xffff0000, v{p}")
            a(f"v_add_f32 v{o}, v{o}, v{T1}")
            a(f"v_add_f32 v{o+1}, v{o+1}, v{T2}")
    PK = VF
    for qb in range(2):
        for i in range(4): a(f"v_cvt_pk_bf16_f32 v{PK+4*qb+i}, v{OACC+32*qb+2*i}, v{OACC+32*qb+2*i+1}")
    a("s_nop 1")
    lane_fix(a, [PK, PK+4])
    a("s_nop 1")
    a(f"buffer_store_dwordx4 {vr(PK,4)}, v{VOUT}, {sr(S_OUT,4)}, 0 offen")
    a(f"buffer_store_dwordx4 {vr(PK+4,4)}, v{VOUT}, {sr(S_OUT,4)}, s{S_T0} offen")

def g1_finish(a):
    a.vm = []; a.lds = []
    o_pack(a, OB[0])
    wo_setup(a, VOW0, VOW1)
    a(f"v_and_b32 v{VPOLL}, 3, v{LANE}"); a(f"v_lshlrev_b32 v{VPOLL}, {cfg.fsh}, v{VPOLL}")
    a(f"v_add_u32 v{T1}, s{S_W2K}, v{VOST}")
    a(f"s_setprio {cfg.g1tp}")
    def wload(e):
        for g in range(4*e, 4*e + 4):
            if cfg.wdep is not None and g > 4*e: a(f"s_waitcnt vmcnt({cfg.wdep})")
            wo_issue(a, g, VOW0, VOW1)
    a("s_waitcnt vmcnt(0)")
    stamp(a, 9)
    a("s_barrier")
    o_stores(a, OB[0])
    for f in range(8): a(f"ds_write_b128 v{T1}, {vr(OB[0]+4*f,4)} offset:{(f>>1)*8192 + (f&1)*1024}")
    a.vm_wait(["ost"]); o_flag(a); stamp(a, 7)
    wload(5)
    a("s_waitcnt lgkmcnt(0)")
    if not cfg.merge:
        a("s_barrier")
        wload(6)
    poll(a, "o2", S_POFF, VPOLL)
    stamp(a, 8)
    a("s_barrier")
    if cfg.merge: wload(6)
    wload(7)
    a("s_waitcnt vmcnt(0)")
    a("s_barrier")

def rest_scalars(a):
    a(f"s_lshl_b32 s{S_T0}, s{S_B}, 5"); a(f"s_add_u32 s{S_T0}, s{S_T0}, s{S_H}"); a(f"s_lshl_b32 s{S_T0}, s{S_T0}, 18")
    srd(a, S_K, 6, S_T0, 524288); srd(a, S_V, 8, S_T0, 524288)
    a(f"s_lshl_b32 s{S_GID}, s{S_BR}, 3"); a(f"s_add_u32 s{S_GID}, s{S_GID}, s{S_B}"); a(f"s_lshl_b32 s{S_GID}, s{S_GID}, 2")
    a(f"s_add_u32 s{S_T0}, s{S_GID}, s{S_XQ}")
    a(f"s_lshl_b32 s{S_T0}, s{S_T0}, 2"); a(f"s_add_u32 s{S_T0}, s{S_T0}, s{S_WV}"); a(f"s_lshl_b32 s{S_T0}, s{S_T0}, 2"); a(f"s_add_u32 s{S_T0}, s{S_T0}, s{S_NB}")
    a(f"s_mul_i32 s{S_T0}, s{S_T0}, {8192 + cfg.opad}"); a(f"s_add_u32 s{S_T0}, s{S_T0}, {WS_O}")
    srd(a, S_O, 28, S_T0, 8192)
    a(f"s_add_u32 s{S_F}, s28, {WS_F}"); a(f"s_addc_u32 s{S_F+1}, s29, 0"); a(f"s_mov_b32 s{S_F+2}, {F_BYTES}"); a(f"s_mov_b32 s{S_F+3}, 0x20000")
    a(f"s_add_u32 s{S_POFF}, s{S_GID}, s{S_XQ}"); a(f"s_lshl_b32 s{S_POFF}, s{S_POFF}, 3"); a(f"s_add_u32 s{S_POFF}, s{S_POFF}, s{S_WV}")
    a(f"s_lshl_b32 s{S_T0}, s{S_GRP}, 2"); a(f"s_add_u32 s{S_POFF}, s{S_POFF}, s{S_T0}"); a(f"s_lshl_b32 s{S_POFF}, s{S_POFF}, {cfg.fsh + 2}")
    a(f"s_lshl_b32 s{S_FOFF}, s{S_NB}, {cfg.fsh}"); a(f"s_add_u32 s{S_FOFF}, s{S_FOFF}, s{S_POFF}")
    a(f"s_add_u32 s{S_IOFF}, s{S_GID}, s{S_XQ}"); a(f"s_lshl_b32 s{S_IOFF}, s{S_IOFF}, 9"); a(f"s_add_u32 s{S_IOFF}, s{S_IOFF}, {FI_OFF}")
    a(f"s_lshl_b32 s{S_CL}, s2, 2"); a(f"s_add_u32 s{S_CL}, s{S_CL}, s{S_WV}")
    a(f"s_mov_b32 s{S_THR}, 0x41000000")
    sc = math.log2(math.e) / math.sqrt(128.0)
    a(f"s_mov_b32 s{S_SC}, 0x{struct.unpack('<I', struct.pack('<f', sc))[0]:08x}")
    if cfg.stamp: a(f"s_mov_b32 s{S_TRI}, 0")

def gen_kernel(a):
    name = KN + "_kernel"
    A = cfg.ahead
    a.raw(".p2align 8"); a.raw(f".type {name},@function"); a.label(name)
    a("s_cmp_ge_u32 s2, 256"); a("s_cbranch_scc1 L_end")
    a("s_load_dwordx16 s[4:19], s[0:1], 0")
    a("s_load_dwordx4 s[20:23], s[0:1], 64")
    a("s_load_dwordx4 s[24:27], s[0:1], 80")
    a("s_load_dwordx2 s[28:29], s[0:1], 96")
    a(f"v_lshrrev_b32 v{U1}, 6, v0")
    a(f"v_and_b32 v{LANE}, 63, v0")
    a(f"v_readfirstlane_b32 s{S_WV}, v{U1}")
    a(f"s_bfe_u32 s{S_BR}, s2, 0x10002")
    a(f"s_and_b32 s{S_XQ}, s2, 3")
    a(f"s_bfe_u32 s{S_NB}, s2, 0x20003")
    a(f"s_bfe_u32 s{S_B}, s2, 0x30005")
    a(f"s_lshr_b32 s{S_GRP}, s{S_WV}, 2"); a(f"s_and_b32 s{S_WV}, s{S_WV}, 3")
    a(f"s_lshl_b32 s{S_H}, s{S_XQ}, 2"); a(f"s_add_u32 s{S_H}, s{S_H}, s{S_NB}"); a(f"s_lshl_b32 s{S_H}, s{S_H}, 1")
    if cfg.rot:
        a(f"s_lshl_b32 s{S_ROT}, s{S_NB}, 1"); a(f"s_add_u32 s{S_ROT}, s{S_ROT}, s{S_B}"); a(f"s_and_b32 s{S_ROT}, s{S_ROT}, {cfg.rotm}")
        if cfg.rotv is not None: a(f"s_cselect_b32 s{S_ROT}, {cfg.rotv}, 0")
    else:
        a(f"s_mov_b32 s{S_ROT}, 0")
    a(f"s_lshl_b32 s{S_W2K}, s{S_WV}, 11")
    a(f"s_lshl_b32 s{S_XB}, s{S_WV}, 12"); a(f"s_add_u32 s{S_XB}, s{S_XB}, {XB}")
    setup_dma_addrs(a)
    a("s_waitcnt lgkmcnt(0)")
    zero_stamps(a); stamp(a, 0); cstamp(a, 10)
    a(f"s_cmp_eq_u32 s{S_BR}, 0")
    for i in range(5): a(f"s_cselect_b64 {sr(4+2*i,2)}, {sr(4+2*i,2)}, {sr(14+2*i,2)}")
    a(f"s_lshl_b32 s{S_T0}, s{S_B}, 17"); srd(a, S_X, 4, S_T0, 131072)
    a(f"s_lshl_b32 s{S_T0}, s{S_H}, 8"); srd(a, S_W, 10, S_T0, 0)
    a(f"s_sub_u32 s{S_W+2}, {512*8192}, s{S_T0}")
    a(f"s_add_u32 s{S_WB}, s{S_W2K}, {WB}")
    a(f"s_cmp_lg_u32 s{S_GRP}, 0"); a("s_cbranch_scc0 L_g0" if cfg.g1first else "s_cbranch_scc1 L_g1")
    cut = len(a.L)
    a.label("L_g0")
    rest_scalars(a)
    setup_rest(a)
    if cfg.warm: code_warm(a, "a", 4, 240)
    set_kv_pos(a, 18 + A)
    p0_compute(a)
    set_va(a, 0)
    if cfg.bp_early:
        def mid(): a("s_barrier"); run(kreads(a, 0))
        scale_pack_q(a, mid)
    else:
        scale_pack_q(a)
        a("s_barrier")
        run(kreads(a, 0))
    g0_lds = list(a.lds)
    a("s_branch L_att")
    g0_text = []
    if cfg.g1first: g0_text = a.L[cut:]; del a.L[cut:]
    a.label("L_g1")
    a.lds = []; a.vm = []
    a("s_setprio 3")
    p0_loader(a)
    g1_aux_r1(a)
    a.lds = g0_lds
    a.label("L_att")
    head_prologue(a)
    stamp(a, 5); cstamp(a, 11)
    attention_loop(a)
    stamp(a, 6)
    a(f"s_cmp_lg_u32 s{S_GRP}, 0"); a("s_cbranch_scc1 L_g1fin")
    g0_aux_r2(a)
    a("s_branch L_fin")
    a.label("L_g1fin")
    g1_finish(a)
    a.label("L_fin")
    dump_stamps(a)
    a.label("L_end")
    a("s_endpgm")
    a.L += g0_text
    for rid, sb in rare_blocks: rare(a, rid, sb)
    a.label("L_codeend")

def gen(**kw):
    for k, v in kw.items(): setattr(cfg, k, v)
    rare_id[0] = 0; rare_blocks.clear()
    a = Asm()
    name = KN + "_kernel"
    a.raw("; @launch grid=(256,1,1) block=(512,1,1) lds=163840")
    a.raw('.amdgcn_target "amdgcn-amd-amdhsa--gfx950"'); a.raw(".text")
    a.raw(f".globl {name}")
    gen_kernel(a)
    a.raw('.section .rodata,"a"'); a.raw(".p2align 6")
    a.raw(f".amdhsa_kernel {name}")
    for d in ["next_free_vgpr 256", "next_free_sgpr 102", "accum_offset 256", "group_segment_fixed_size 0", "kernarg_size 104",
              "user_sgpr_count 2", "user_sgpr_kernarg_segment_ptr 1", "system_sgpr_workgroup_id_x 1"]:
        a.raw("  .amdhsa_" + d)
    a.raw(".end_amdhsa_kernel")
    return a.text()

if __name__ == "__main__":
    open(f"cdna_kernels/{KN}.s", "w").write(gen())
    open("k21_a.s", "w").write(gen(stamp=True))
    open("k21_b.s", "w").write(gen(merge=True, pre62=2, z1_after=9))
    open("k21_c.s", "w").write(gen(merge=False, pre62=0, z1_after=8, g1first=False))
    open("k21_d.s", "w").write(gen(g1first=True, rotm=0))
    open("k21_e.s", "w").write(gen(rotm=4, t_pub=56, t_poll=61, o_ticks=(0, 0, 0)))
```
